```python
import torch

def _softmax(x, axis=-1):
    return torch.softmax(x, dim=axis)
def _gelu(x):
    return torch.nn.functional.gelu(x, approximate="tanh")
def _silu(x):
    return torch.nn.functional.silu(x)
def _sigmoid(x):
    return torch.sigmoid(x)
def _layernorm(x, axis=-1, eps=1e-5):
    m = x.mean(dim=axis, keepdim=True)
    v = x.var(dim=axis, keepdim=True, unbiased=False)
    return (x - m) / torch.sqrt(v + eps)
def _scatter_add(tgt, idx, src, axis=0):
    return tgt.clone().index_add_(axis, idx, src)
def _segment_sum(src, seg, n):
    out = torch.zeros((n,) + src.shape[1:], dtype=src.dtype)
    return out.index_add_(0, seg, src)
def _pad(x, pw):
    flat = tuple(v for pair in reversed(pw) for v in pair)
    return torch.nn.functional.pad(x, flat)

kernel_name = 'standalone__edge_featured_mpnn_mpnn__graph'

def setup_inputs():

    _w = (lambda a: (lambda t: t.to(torch.bfloat16) if t.is_floating_point() else t)(torch.as_tensor(a)))
    N, deg, D, De = 10000, 64, 64, max(4, 1)
    E = N * deg
    H = 2 * D
    return {
        "x": _w((lambda *s: torch.randn(*s, dtype=torch.bfloat16) * 0.05)(N, D)),
        "e_attr": _w((lambda *s: torch.randn(*s, dtype=torch.bfloat16) * 1.6)(E, De)),
        "src": _w((lambda lo, hi, *s: torch.randint(lo, hi, s))(0, N, E).to(torch.int64)),
        "dst": _w((lambda lo, hi, *s: torch.randint(lo, hi, s))(0, N, E).to(torch.int64)),
        "w1": _w((lambda *s: torch.randn(*s, dtype=torch.bfloat16) * 1.6)(2 * D + De, H) * (1.0 / (2 * D + De) ** 0.5)),
        "b1": _w((lambda *s: torch.randn(*s, dtype=torch.bfloat16) * 3.2)(H) * 0.01),
        "w2": _w((lambda *s: torch.randn(*s, dtype=torch.bfloat16) * 0.05)(H, D) * (1.0 / H ** 0.5)),
        "b2": _w((lambda *s: torch.randn(*s, dtype=torch.bfloat16) * 0.05)(D) * 0.01),
    }

def reference(x, e_attr, src, dst, w1, b1, w2, b2):
    N, D = x.shape
    h_src = x[src]
    h_dst = x[dst]
    m_in = torch.concatenate([h_src, h_dst, e_attr], axis=-1)
    h = _silu(m_in @ w1 + b1)
    msg = h @ w2 + b2
    return _segment_sum(msg, dst, N)
```

```python
N_NODES=10000; E=640000
CHUNK=2560; NCHUNK=250; NB=256
WS_SORTED=0
WS_PACKT=0x280000
WS_FRAG=0x2C0000
WS_END=0x2D0000
MAGIC_B=214749
LOG2E=1.4426950408889634
import struct
def f2u(x): return struct.unpack("<I", struct.pack("<f", x))[0]
class Em:
    def __init__(self): self.L=[]
    def __call__(self, s):
        for line in s.split("\n"):
            line=line.strip()
            if line: self.L.append(line)
    def label(self, s): self.L.append(s+":")
    def text(self):
        out=[]
        for l in self.L:
            out.append(l if l.endswith(":") else "    "+l)
        return "\n".join(out)+"\n"
def vr(a,n=1): return f"v{a}" if n==1 else f"v[{a}:{a+n-1}]"
def sr(a,n=1): return f"s{a}" if n==1 else f"s[{a}:{a+n-1}]"
def srd(e, s, base_lo, base_hi, nrec, stride=0):
    e(f"s_mov_b32 s{s}, s{base_lo}")
    e(f"s_and_b32 s{s+1}, s{base_hi}, 0xffff")
    if stride: e(f"s_or_b32 s{s+1}, s{s+1}, {stride<<16:#x}")
    e(f"s_mov_b32 s{s+2}, {nrec:#x}")
    e(f"s_mov_b32 s{s+3}, 0x20000")
def scan_incl(e, v):
    for ctl in ("row_shr:1 row_mask:0xf bank_mask:0xf bound_ctrl:0","row_shr:2 row_mask:0xf bank_mask:0xf bound_ctrl:0",
                "row_shr:4 row_mask:0xf bank_mask:0xf bound_ctrl:0","row_shr:8 row_mask:0xf bank_mask:0xf bound_ctrl:0",
                "row_bcast:15 row_mask:0xa bank_mask:0xf","row_bcast:31 row_mask:0xc bank_mask:0xf"):
        e("s_nop 1")
        e(f"v_add_u32_dpp v{v}, v{v}, v{v} {ctl}")
def kdesc(name, vgpr, sgpr):
    acc=(vgpr+3)//4*4
    return f""".section .rodata,"a"
.p2align 6
.amdhsa_kernel {name}
  .amdhsa_next_free_vgpr {vgpr}
  .amdhsa_next_free_sgpr {sgpr}
  .amdhsa_accum_offset {acc}
  .amdhsa_group_segment_fixed_size 0
  .amdhsa_kernarg_size 88
  .amdhsa_user_sgpr_count 2
  .amdhsa_user_sgpr_kernarg_segment_ptr 1
  .amdhsa_system_sgpr_workgroup_id_x 1
.end_amdhsa_kernel
.text
"""
```

```python
from common import *
K1_LDS=12288
def gen_k1():
    e=Em()
    e.label("sort_kernel")
    e("s_cmp_ge_u32 s2, 256")
    e("s_cbranch_scc1 K1_END")
    e("s_load_dwordx4 s[4:7], s[0:1], 16")
    e("s_load_dwordx2 s[8:9], s[0:1], 80")
    e("s_load_dwordx2 s[10:11], s[0:1], 32")
    e("s_load_dwordx2 s[20:21], s[0:1], 48")
    e("v_lshlrev_b32 v1, 4, v0")
    e("v_and_b32 v2, 63, v0")
    e("s_mul_i32 s22, s2, 10240")
    e(f"s_mov_b32 s28, {MAGIC_B}")
    e("s_movk_i32 s29, 625")
    e("s_cmp_ge_u32 s2, 250")
    e("s_cbranch_scc1 K1_PREP")
    e("s_waitcnt lgkmcnt(0)")
    srd(e,16,6,7,E*4)
    srd(e,12,4,5,E*4)
    e("buffer_load_dwordx4 v[4:7], v1, s[16:19], s22 offen")
    e("buffer_load_dwordx4 v[8:11], v1, s[12:15], s22 offen")
    srd(e,24,8,9,WS_END)
    e("v_mov_b32 v12, 0")
    e("v_mov_b32 v13, 1")
    e("v_lshlrev_b32 v3, 2, v0")
    e("v_cmp_gt_u32 vcc, 256, v0")
    e("s_and_saveexec_b64 s[30:31], vcc")
    e("s_cbranch_execz K1_Z")
    e("ds_write_b32 v3, v12")
    e.label("K1_Z")
    e("s_mov_b64 exec, s[30:31]")
    e("v_lshlrev_b32 v14, 22, v0")
    e("s_waitcnt lgkmcnt(0)")
    e("s_barrier")
    e("s_waitcnt vmcnt(1)")
    for j in range(4):
        e(f"v_mul_u32_u24 v{16+j}, s28, v{4+j}")
    for j in range(4):
        e(f"v_lshrrev_b32 v{16+j}, 23, v{16+j}")
    for j in range(4):
        e(f"v_and_b32 v{16+j}, 0xff, v{16+j}")
    for j in range(4):
        e(f"v_mad_u32_u24 v{20+j}, v{16+j}, s29, 15")
    for j in range(4):
        e(f"v_lshlrev_b32 v{16+j}, 2, v{16+j}")
        e(f"ds_add_rtn_u32 v{24+j}, v{16+j}, v13")
    for j in range(4):
        e(f"v_lshrrev_b32 v{20+j}, 4, v{20+j}")
        e(f"v_sub_u32 v{20+j}, v{4+j}, v{20+j}")
        e(f"v_and_b32 v{20+j}, 63, v{20+j}")
    e("s_waitcnt vmcnt(0)")
    for j in range(4):
        e(f"v_and_b32 v{8+j}, 0x3fff, v{8+j}")
        e(f"v_lshl_or_b32 v{20+j}, v{8+j}, 6, v{20+j}")
        e(f"v_or_b32 v{20+j}, v{20+j}, v14")
        if j<3: e("v_add_u32 v14, 0x100000, v14")
    e("s_waitcnt lgkmcnt(0)")
    e("s_barrier")
    e("v_lshlrev_b32 v28, 4, v2")
    e("ds_read_b128 v[32:35], v28")
    e("s_waitcnt lgkmcnt(0)")
    e("v_add_u32 v36, v32, v33")
    e("v_add_u32 v37, v34, v35")
    e("v_add_u32 v36, v36, v37")
    e("v_mov_b32 v37, v36")
    scan_incl(e,37)
    e("v_sub_u32 v40, v37, v36")
    e("v_add_u32 v41, v40, v32")
    e("v_add_u32 v42, v41, v33")
    e("v_add_u32 v43, v42, v34")
    e("ds_write_b128 v28, v[40:43] offset:1024")
    for j in range(4):
        e(f"ds_read_b32 v{44+j}, v{16+j} offset:1024")
    e("v_cmp_gt_u32 vcc, 64, v0")
    e("s_and_saveexec_b64 s[30:31], vcc")
    e("s_cbranch_execz K1_P")
    e("v_lshlrev_b32 v48, 12, v2")
    e("s_lshl_b32 s23, s2, 2")
    e(f"s_add_u32 s23, s23, {WS_PACKT}")
    for j in range(4):
        e(f"v_lshl_or_b32 v{32+j}, v{32+j}, 16, v{40+j}")
        e(f"buffer_store_dword v{32+j}, v48, s[24:27], s23 offen offset:{1024*j}")
    e.label("K1_P")
    e("s_mov_b64 exec, s[30:31]")
    e("s_waitcnt lgkmcnt(0)")
    for j in range(4):
        e(f"v_add_lshl_u32 v{44+j}, v{44+j}, v{24+j}, 2")
        e(f"ds_write_b32 v{44+j}, v{20+j} offset:2048")
    e("s_waitcnt lgkmcnt(0)")
    e("s_barrier")
    e("ds_read_b128 v[4:7], v1 offset:2048")
    e("s_waitcnt lgkmcnt(0)")
    e("buffer_store_dwordx4 v[4:7], v1, s[24:27], s22 offen")
    e("s_endpgm")
    e.label("K1_PREP")
    e("v_lshrrev_b32 v3, 6, v0")
    e("v_and_b32 v4, 31, v2")
    e("v_lshrrev_b32 v5, 5, v2")
    e("v_readfirstlane_b32 s23, v3")
    e("s_sub_u32 s22, s2, 250")
    e("s_mul_i32 s22, s22, 10")
    e("s_add_u32 s22, s22, s23")
    e("s_cmp_ge_u32 s22, 52")
    e("s_cbranch_scc1 K1_END")
    e("s_waitcnt lgkmcnt(0)")
    srd(e,12,10,11,132*128*2)
    srd(e,16,20,21,128*64*2)
    srd(e,24,8,9,WS_END)
    e(f"s_mov_b32 s30, {f2u(-LOG2E):#x}")
    e("v_lshlrev_b32 v6, 4, v2")
    e("s_lshl_b32 s31, s22, 10")
    e(f"s_add_u32 s31, s31, {WS_FRAG}")
    e("v_lshlrev_b32 v7, 1, v4")
    e("s_cmp_ge_u32 s22, 36")
    e("s_cbranch_scc1 K1_W2")
    e("s_cmp_ge_u32 s22, 20")
    e("s_cbranch_scc1 K1_W1D")
    e("s_cmp_ge_u32 s22, 16")
    e("s_cbranch_scc1 K1_WE")
    def load_w1(rowbase_bytes):
        e("v_lshl_add_u32 v8, v5, 13, v7")
        e("s_and_b32 s33, s32, 3")
        e("s_lshl_b32 s33, s33, 11")
        e("s_lshr_b32 s34, s32, 2")
        e("s_lshl_b32 s34, s34, 6")
        e("s_add_u32 s33, s33, s34")
        if rowbase_bytes: e(f"s_add_u32 s33, s33, {rowbase_bytes}")
        for j in range(8):
            e(f"buffer_load_ushort v{10+j}, v8, s[12:15], s33 offen offset:{256*j}")
    e("s_mov_b32 s32, s22")
    load_w1(0)
    e("s_waitcnt vmcnt(0)")
    for j in range(8):
        e(f"v_lshlrev_b32 v{10+j}, 16, v{10+j}")
        e(f"v_mul_f32 v{10+j}, s30, v{10+j}")
    for j in range(4):
        e(f"v_cvt_pk_bf16_f32 v{20+j}, v{10+2*j}, v{11+2*j}")
    e("s_branch K1_ST")
    e.label("K1_W1D")
    e("s_sub_u32 s32, s22, 20")
    load_w1(64*256)
    e("s_waitcnt vmcnt(0)")
    for j in range(4):
        e(f"v_lshl_or_b32 v{20+j}, v{11+2*j}, 16, v{10+2*j}")
    e("s_branch K1_ST")
    e.label("K1_WE")
    e("s_sub_u32 s32, s22, 16")
    e("s_lshl_b32 s33, s32, 6")
    e(f"s_add_u32 s33, s33, {128*256}")
    for j in range(4):
        e(f"buffer_load_ushort v{10+j}, v7, s[12:15], s33 offen offset:{256*j}")
    e("s_waitcnt vmcnt(0)")
    for j in range(4):
        e(f"v_lshlrev_b32 v{10+j}, 16, v{10+j}")
        e(f"v_mul_f32 v{10+j}, s30, v{10+j}")
    for j in range(2):
        e(f"v_cvt_pk_bf16_f32 v{20+j}, v{10+2*j}, v{11+2*j}")
    for j in range(2):
        e(f"v_lshlrev_b32 v14, 16, v{20+j}")
        e(f"v_and_b32 v15, 0xffff0000, v{20+j}")
        e(f"v_sub_f32 v14, v{10+2*j}, v14")
        e(f"v_sub_f32 v15, v{11+2*j}, v15")
        e(f"v_cvt_pk_bf16_f32 v{16+j}, v14, v15")
    e("v_cmp_eq_u32 vcc, 1, v5")
    e("s_nop 1")
    e("v_cndmask_b32 v20, v20, v16, vcc")
    e("v_cndmask_b32 v21, v21, v17, vcc")
    e("v_mov_b32 v22, 0")
    e("v_mov_b32 v23, 0")
    e("s_branch K1_ST")
    e.label("K1_W2")
    e("s_sub_u32 s32, s22, 36")
    e("s_and_b32 s33, s32, 7")
    e("s_lshl_b32 s33, s33, 11")
    e("s_lshr_b32 s34, s32, 3")
    e("s_lshl_b32 s34, s34, 6")
    e("s_add_u32 s33, s33, s34")
    e("v_lshl_add_u32 v8, v5, 10, v7")
    for j in range(8):
        e(f"buffer_load_ushort v{10+j}, v8, s[16:19], s33 offen offset:{128*j}")
    e("s_waitcnt vmcnt(0)")
    for j in range(4):
        e(f"v_lshl_or_b32 v{20+j}, v{11+2*j}, 16, v{10+2*j}")
    e.label("K1_ST")
    e("buffer_store_dwordx4 v[20:23], v6, s[24:27], s31 offen")
    e.label("K1_END")
    e("s_endpgm")
    return e.text(), 56, 40
```

```python
from common import *
L_LIST=0; CAPF=3072; LIST_N=3136
L_HSUM=50176
L_QPK=70656
L_GBUF=91136
L_STG=123904
L_CNT=160768; L_BASE16=L_CNT+256; L_DEG=L_CNT+512; L_FLAG=L_CNT+768
K2_LDS=161792
PL_STRIDE=272; L_PHI=0; L_PLO=64*PL_STRIDE
V_TID=0; V_LANE=1
D=[32,48]; EE=64
Nn=[80,82,84,86]; Pp=[88,90,92,94]
AX=96; F=112; FN=116
PT=120; R=122; T=124; TM=126; TM2=127
W=128; W5=192
IX=208
AR=216
V_LI=220; V_LE=221; V_QC=222; V_QE=223; V_QO=224; V_HC=225; V_HA=226; V_BASE=227
V_ONE=228
NV=232
S_XS=4; S_EA=8; S_WS=12; S_XR=16
S_W=20; S_N0=21; S_NN=22; S_T=23; S_TE=24
S_KB=25; S_OA=26; S_OB=27; S_KBN=28; S_OAN=29; S_OBN=30; S_OEN=31; S_OON=32
S_FL=34; S_GB=36; S_THR=37; S_MODE=38; S_M4=39
NULL_SRC=0x3fff; NULL_EOFF=0x7ffffff0; KONE=0x3f803f80
def pr(x): return f"v[{x}:{x+1}]"
def q4(x): return f"v[{x}:{x+3}]"

def desc_ops(tau_s):
    return [
     "s_add_u32 s41, s40, 31",
     f"v_cmp_ge_u32 vcc, s41, v{V_BASE}",
     "s_bcnt1_i32_b64 s42, vcc",
     "s_sub_u32 s42, s42, 1",
     "s_max_i32 s42, s42, 0",
     f"v_readlane_b32 s43, v{V_BASE}, s42",
     "s_sub_u32 s49, s42, 1",
     "s_max_i32 s49, s49, 0",
     f"s_lshl_b32 s{S_OBN}, s42, 9",
     "s_sub_i32 s44, s43, s40",
     "s_lshr_b32 s45, s44, 2",
     "s_sub_i32 s46, 0, s44",
     "s_and_b32 s47, s46, 0x60",
     "s_cselect_b32 s47, 8, 0",
     "s_cmp_lt_u32 s46, 128",
     "s_cselect_b32 s47, 8, s47",
     "s_cmp_ge_i32 s44, 0",
     f"s_cselect_b32 s{S_KBN}, s45, s47",
     "s_cselect_b32 s49, s49, s42",
     f"s_lshl_b32 s{S_OAN}, s49, 9",
     "s_bitcmp1_b32 s49, 0",
     f"s_cselect_b32 s{S_OEN}, s{S_OBN}, s{S_OAN}",
     f"s_cselect_b32 s{S_OON}, s{S_OAN}, s{S_OBN}",
    ]
def mfma(blk, step, d):
    a = q4(AX+4*step) if step<4 else q4(F)
    b = q4(W+16*blk+4*step) if step<4 else q4(W5+4*blk)
    c = "0" if step==0 else f"v[{d}:{d+15}]"
    return f"v_mfma_f32_32x32x16_bf16 v[{d}:{d+15}], {a}, {b}, {c}"
def rd_A():
    return [f"ds_read_b128 {q4(AX+4*s)}, v{AR+s}" for s in range(4)]
def rd_Q():
    L=[]
    for blk in range(4):
        L.append(f"ds_read_b32 v{W5+4*blk+2}, v{V_QE} offset:{128*blk}")
        L.append(f"ds_read_b32 v{W5+4*blk+3}, v{V_QO} offset:{128*blk}")
    return L
def rd_idx():
    return [f"ds_read_b32 v{IX+2*q}, v{V_LI} offset:{128*q}" for q in range(4)]
def rd_ent(): return [f"ds_read_b128 {q4(FN)}, v{V_LE}"]
def dma():
    L=[]
    for q in range(4):
        L.append([f"s_add_u32 m0, s{S_GB}, {1024*q}", "s_nop 0", f"buffer_load_dwordx4 {pr(IX+2*q)}, s[{S_XS}:{S_XS+3}], 0 idxen offen lds"])
    return L
def egather(): return f"buffer_load_dwordx2 {pr(FN)}, v{FN+1}, s[{S_EA}:{S_EA+3}], 0 offen"
def mvF(): return [f"v_pk_mov_b32 {pr(F)}, {pr(FN)}, {pr(FN)} op_sel:[0,1]", f"v_pk_mov_b32 {pr(F+2)}, {pr(FN+2)}, {pr(FN+2)} op_sel:[0,1]"]
def finalize(n, p, blk, mid=None):
    L=[f"v_rcp_f32 v{R}, v{p}", f"v_rcp_f32 v{R+1}, v{p+1}",
       f"v_max_f32 v{TM}, v{p}, v{p+1}",
       f"v_cmp_lt_f32 vcc, s{S_THR}, v{TM}"]
    if mid: L+=mid
    L+=[f"v_pk_mul_f32 {pr(T)}, {pr(n)}, {pr(R)}",
        f"s_or_b64 s[{S_FL}:{S_FL+1}], s[{S_FL}:{S_FL+1}], vcc",
        f"v_add_f32 v{TM2}, v{T}, v{T+1}",
        f"ds_add_f32 v{V_HA}, v{TM2} offset:{128*blk}"]
    return L
def pk_run(blk, kb):
    z=D[blk&1]; n=Nn[blk]; ph=Pp[blk]
    L=[]; pc=ph; nz=None
    for j in range(8):
        e=EE+2*j; zj=z+2*j
        last=(j==7)
        if j==kb:
            dst = ph if last else (PT if pc==ph else ph)
            if last and pc==ph:
                L+=finalize(n,pc,blk)
                L.append(f"v_pk_add_f32 {pr(ph)}, {pr(e)}, {pr(V_ONE)}")
            else:
                L+=finalize(n,pc,blk,mid=[f"v_pk_add_f32 {pr(dst)}, {pr(e)}, {pr(V_ONE)}"])
            pc=dst
            if last: L.append(f"v_pk_mov_b32 {pr(n)}, {pr(zj)}, {pr(zj)} op_sel:[0,1]")
            else: nz=zj
        else:
            src = nz if nz is not None else n
            nz=None
            dst = ph if last else (PT if pc==ph else ph)
            if dst==pc:
                L.append(f"v_pk_fma_f32 {pr(n)}, {pr(src)}, {pr(e)}, {pr(src)}")
                L.append(f"v_pk_fma_f32 {pr(n)}, {pr(zj)}, {pr(pc)}, {pr(n)}")
                L.append(f"v_pk_fma_f32 {pr(pc)}, {pr(pc)}, {pr(e)}, {pr(pc)}")
            else:
                L.append(f"v_pk_fma_f32 {pr(n)}, {pr(src)}, {pr(e)}, {pr(src)}")
                L.append(f"v_pk_fma_f32 {pr(dst)}, {pr(pc)}, {pr(e)}, {pr(pc)}")
                L.append(f"v_pk_fma_f32 {pr(n)}, {pr(zj)}, {pr(pc)}, {pr(n)}")
            pc=dst
    assert pc==ph
    return L
def t_run(blk, side):
    z=D[blk&1]; nb=(blk+1)&3; d=D[(blk+1)&1]
    L=[]; side=list(side)
    for i in range(16):
        if i%3==0 and i<=12: L.append(mfma(nb,i//3,d))
        L.append(f"v_exp_f32 v{EE+i}, v{z+i}")
        if side:
            g=side.pop(0)
            L+= g if isinstance(g,list) else [g]
    for g in side: L+= g if isinstance(g,list) else [g]
    return L
def tile_body(e, kb):
    side=[f"s_lshl_b32 s40, s{S_T}, 5", "s_add_u32 s40, s40, 32"]+desc_ops(None)
    pre=[]
    if kb<8: pre.append(f"v_add_u32 v{V_HA}, s{S_OA}, v{V_HC}")
    for s in pre: e(s)
    for s in t_run(0, side[:16]): e(s)
    for s in pk_run(0,kb): e(s)
    for s in t_run(1, side[16:]): e(s)
    e(f"v_add_u32 v{V_QE}, s{S_OEN}, v{V_QC}")
    e(f"v_add_u32 v{V_QO}, s{S_OON}, v{V_QC}")
    for s in pk_run(1,kb): e(s)
    for s in t_run(2, []): e(s)
    e("s_waitcnt vmcnt(0)")
    for s in rd_A(): e(s)
    for s in mvF(): e(s)
    for s in rd_Q(): e(s)
    for s in rd_idx(): e(s)
    for s in rd_ent(): e(s)
    e(f"v_add_u32 v{V_LI}, 0x200, v{V_LI}")
    e(f"v_add_u32 v{V_LE}, 0x200, v{V_LE}")
    for s in pk_run(2,kb): e(s)
    e("s_waitcnt lgkmcnt(0)")
    dm=dma()
    for s in t_run(3, [[],dm[0],[],dm[1],[],dm[2],[],dm[3],[],egather()]): e(s)
    for s in pk_run(3,kb): e(s)

def gen_k2():
    e=Em()
    e.label("main_kernel")
    e("s_cmp_ge_u32 s2, 256")
    e("s_cbranch_scc1 K2_END")
    e("s_load_dwordx4 s[40:43], s[0:1], 0")
    e("s_load_dwordx2 s[44:45], s[0:1], 40")
    e("s_load_dwordx4 s[60:63], s[0:1], 56")
    e("s_load_dwordx2 s[52:53], s[0:1], 80")
    e(f"v_and_b32 v{V_LANE}, 63, v0")
    e("v_lshrrev_b32 v2, 6, v0")
    e("s_mul_i32 s46, s2, 625")
    e(f"v_readfirstlane_b32 s{S_W}, v2")
    e("s_add_u32 s47, s46, 15")
    e(f"s_lshr_b32 s{S_N0}, s47, 4")
    e("s_add_u32 s47, s46, 640")
    e("s_lshr_b32 s47, s47, 4")
    e(f"s_sub_u32 s{S_NN}, s47, s{S_N0}")
    e("v_and_b32 v2, 31, v1")
    e("v_lshrrev_b32 v3, 5, v1")
    e("v_and_b32 v4, 0x1fc, v0")
    e("s_lshl_b32 s46, s2, 10")
    e(f"s_add_u32 s46, s46, {WS_PACKT}")
    e("s_waitcnt lgkmcnt(0)")
    srd(e,S_WS,52,53,WS_END)
    e(f"buffer_load_dword v5, v4, s[{S_WS}:{S_WS+3}], s46 offen")
    e(f"buffer_load_dword v6, v4, s[{S_WS}:{S_WS+3}], s46 offen offset:512")
    srd(e,S_XR,40,41,N_NODES*128)
    e(f"s_lshr_b32 s46, s{S_W}, 2")
    e("s_lshl_b32 s46, s46, 5")
    e(f"s_add_u32 s46, s46, s{S_N0}")
    e("s_lshl_b32 s46, s46, 7")
    e("v_lshlrev_b32 v7, 7, v2")
    e("v_lshl_add_u32 v7, v3, 6, v7")
    for s in range(4):
        e(f"buffer_load_dwordx4 {q4(8+4*s)}, v7, s[{S_XR}:{S_XR+3}], s46 offen offset:{16*s}")
    srd(e,56,44,45,256)
    e(f"s_and_b32 s47, s{S_W}, 3")
    e("s_lshl_b32 s47, s47, 6")
    e("v_lshlrev_b32 v24, 1, v2")
    e("buffer_load_ushort v24, v24, s[56:59], s47 offen")
    e("v_lshlrev_b32 v25, 4, v1")
    for i in range(5):
        if i<4: e(f"s_add_u32 s47, s{S_W}, {8*i}")
        else:
            e(f"s_and_b32 s47, s{S_W}, 3"); e("s_add_u32 s47, s47, 32")
        e("s_lshl_b32 s47, s47, 10")
        e(f"s_add_u32 m0, s47, {L_STG}")
        e(f"s_add_u32 s47, s47, {WS_FRAG}")
        e(f"buffer_load_dwordx4 v25, s[{S_WS}:{S_WS+3}], s47 offen lds")
    srd(e,S_XS,40,41,N_NODES,stride=128)
    srd(e,S_EA,42,43,E*8)
    def lds_init(first):
        e("v_lshlrev_b32 v26, 4, v0")
        e(f"v_mov_b32 v28, {NULL_SRC:#x}")
        e(f"v_mov_b32 v29, {NULL_EOFF:#x}")
        e("v_mov_b32 v30, 0")
        e("v_mov_b32 v31, 0")
        for i in range(6): e(f"ds_write_b128 v26, v[28:31] offset:{8192*i}")
        lab="K2_I%d"%(0 if first else 1)
        e("v_cmp_gt_u32 vcc, 64, v0")
        e("s_and_saveexec_b64 s[46:47], vcc")
        e(f"s_cbranch_execz {lab}")
        e("ds_write_b128 v26, v[28:31] offset:49152")
        e(f"v_lshlrev_b32 v27, 2, v0")
        e(f"v_add_u32 v27, {L_CNT}, v27")
        e("ds_write_b32 v27, v30")
        if first:
            e("ds_write_b32 v27, v30 offset:512")
            e("ds_write_b32 v27, v30 offset:768")
        e.label(lab)
        e("s_mov_b64 exec, s[46:47]")
    lds_init(True)
    def zero_hsum(lab):
        e("v_lshlrev_b32 v26, 4, v0")
        e(f"v_add_u32 v26, {L_HSUM}, v26")
        for r in (28,29,30,31): e(f"v_mov_b32 v{r}, 0")
        e("ds_write_b128 v26, v[28:31]")
        e("ds_write_b128 v26, v[28:31] offset:8192")
        e("v_cmp_gt_u32 vcc, 256, v0")
        e("s_and_saveexec_b64 s[46:47], vcc")
        e(f"s_cbranch_execz {lab}")
        e("ds_write_b128 v26, v[28:31] offset:16384")
        e.label(lab)
        e("s_mov_b64 exec, s[46:47]")
    zero_hsum("K2_ZH0")
    e("s_waitcnt vmcnt(10)")
    e("v_lshrrev_b32 v26, 2, v0")
    e("v_and_b32 v27, 3, v0")
    e("v_lshlrev_b32 v27, 2, v27")
    e("v_cmp_gt_u32 vcc, 122, v26")
    e("v_lshrrev_b32 v28, 16, v5")
    e("v_lshrrev_b32 v29, 16, v6")
    e("v_cndmask_b32 v29, 0, v29, vcc")
    e("v_and_b32 v5, 0xffff, v5")
    e("v_and_b32 v6, 0xffff, v6")
    e("s_movk_i32 s46, 2560")
    e("v_mad_u32_u24 v30, v26, s46, v5")
    e("v_add_u32 v31, 128, v26")
    e("v_mad_u32_u24 v31, v31, s46, v6")
    e("v_add_lshl_u32 v30, v30, v27, 2")
    e("v_add_lshl_u32 v31, v31, v27, 2")
    e("v_max_u32 v5, v28, v29")
    e("v_sub_u32 v28, v28, v27")
    e("v_sub_u32 v29, v29, v27")
    e(f"v_mov_b32 v6, {NULL_EOFF:#x}")
    e("v_cmp_lt_i32 vcc, 16, v28")
    e("v_cmp_lt_i32 s[46:47], 16, v29")
    e(f"buffer_load_dwordx4 v[32:35], v30, s[{S_WS}:{S_WS+3}], 0 offen")
    e(f"buffer_load_dwordx4 v[40:43], v31, s[{S_WS}:{S_WS+3}], 0 offen")
    e("v_cndmask_b32 v30, v6, v30, vcc")
    e("v_cndmask_b32 v31, v6, v31, s[46:47]")
    e(f"buffer_load_dwordx4 v[36:39], v30, s[{S_WS}:{S_WS+3}], 0 offen offset:64")
    e(f"buffer_load_dwordx4 v[44:47], v31, s[{S_WS}:{S_WS+3}], 0 offen offset:64")
    e("v_cmp_lt_u32 s[64:65], 32, v5")
    e("s_waitcnt vmcnt(4) lgkmcnt(0)")
    e("s_barrier")
    e("s_cmp_eq_u64 s[64:65], 0")
    e("s_cbranch_scc1 K2_NF")
    e(f"v_mov_b32 v5, {L_FLAG}")
    e("v_mov_b32 v6, 1")
    e("ds_write_b32 v5, v6")
    e.label("K2_NF")
    e("v_lshlrev_b32 v25, 4, v1")
    e(f"s_and_b32 s46, s{S_W}, 3")
    e("s_lshl_b32 s47, s46, 12")
    e(f"s_add_u32 s47, s47, {L_STG+20*1024}")
    e("v_add_u32 v26, s47, v25")
    for s_ in range(4): e(f"ds_read_b128 {q4(64+4*s_)}, v26 offset:{1024*s_}")
    e(f"v_add_u32 v27, {L_STG}, v25")
    e("s_waitcnt lgkmcnt(0)")
    for s_ in range(4):
        c="0" if s_==0 else "v[96:111]"
        e(f"v_mfma_f32_32x32x16_bf16 v[96:111], {q4(8+4*s_)}, {q4(64+4*s_)}, {c}")
    for f in range(16): e(f"ds_read_b128 {q4(W+4*f)}, v27 offset:{1024*f}")
    for blk in range(4): e(f"ds_read_b128 {q4(W5+4*blk)}, v27 offset:{1024*(16+blk)}")
    e(f"s_lshr_b32 s47, s{S_W}, 2")
    e("s_lshl_b32 s47, s47, 14")
    e("s_lshl_b32 s46, s46, 7")
    e("s_add_u32 s47, s47, s46")
    e(f"s_add_u32 s47, s47, {L_QPK}")
    e("v_lshlrev_b32 v26, 2, v2")
    e("v_lshl_add_u32 v26, v3, 11, v26")
    e("v_add_u32 v26, s47, v26")
    e("v_lshlrev_b32 v24, 16, v24")
    e(f"s_mov_b32 s46, {f2u(-LOG2E/2):#x}")
    def qrows(rs):
        for r in rs:
            e(f"v_add_f32 v{96+r}, v{96+r}, v24")
            e(f"v_mul_f32 v{96+r}, s46, v{96+r}")
        for r in rs:
            e(f"v_cvt_pk_bf16_f32 v{64+r}, v{96+r}, v{96+r}")
        for r in rs:
            e(f"v_lshlrev_b32 v{64+r}, 16, v{64+r}")
            e(f"v_sub_f32 v{64+r}, v{96+r}, v{64+r}")
        for r in rs:
            e(f"v_cvt_pk_bf16_f32 v{64+r}, v{96+r}, v{64+r}")
            e(f"ds_write_b32 v26, v{64+r} offset:{512*((r&3)+8*(r>>2))}")
    e("s_nop 7")
    e("s_nop 7")
    qrows(range(0,4))
    e(f"s_cmp_ge_u32 s{S_W}, 4")
    e("s_cbranch_scc1 K2_QD")
    qrows(range(4,16))
    e.label("K2_QD")
    e("s_waitcnt vmcnt(0)")
    e("v_mov_b32 v7, 1")
    e(f"s_mov_b32 s46, {L_CNT}")
    for k in range(16):
        e(f"v_and_b32 v{64+k}, 63, v{32+k}")
        e(f"v_lshl_add_u32 v{64+k}, v{64+k}, 2, s46")
    groups=[(0,28,0),(4,28,16),(8,29,0),(12,29,16)]
    for gi,(k0,rem,off) in enumerate(groups):
        for j in range(4):
            e(f"v_cmpx_lt_i32 vcc, {off+j}, v{rem}")
            if j==0: e(f"s_cbranch_execz K2_R{gi}")
            e(f"ds_add_rtn_u32 v{96+k0+j}, v{64+k0+j}, v7")
        e.label(f"K2_R{gi}")
        e("s_mov_b64 exec, -1")
    e("s_waitcnt lgkmcnt(0)")
    e("s_barrier")
    def node_scan(first):
        e(f"v_lshlrev_b32 v4, 2, v1")
        e(f"v_add_u32 v4, {L_CNT}, v4")
        e("ds_read_b32 v5, v4")
        if first: e("ds_read_b32 v6, v4 offset:768")
        e("s_waitcnt lgkmcnt(0)")
        if first: e("v_readfirstlane_b32 s50, v6")
        e("v_add_u32 v6, 3, v5")
        e("v_and_b32 v6, -4, v6")
        e("v_max_u32 v6, 32, v6")
        e(f"v_cmp_gt_u32 vcc, s{S_NN}, v1")
        e("s_nop 1")
        e("v_cndmask_b32 v6, 0, v6, vcc")
        e("v_mov_b32 v26, v6")
        scan_incl(e,26)
        e("v_sub_u32 v27, v26, v6")
        e("s_nop 0")
        e(f"v_readlane_b32 s{S_M4}, v26, 63")
        e("v_lshlrev_b32 v30, 4, v27")
        if L_LIST: e(f"v_add_u32 v30, {L_LIST}, v30")
        e("ds_write_b32 v4, v30 offset:256")
        e(f"v_mov_b32 v{V_BASE}, 0x7fffffff")
        e(f"v_cndmask_b32 v{V_BASE}, v{V_BASE}, v27, vcc")
    node_scan(True)
    e(f"s_cmp_lg_u32 s{S_W}, 0")
    e("s_cbranch_scc1 K2_DG")
    e("ds_write_b32 v4, v5 offset:512")
    e.label("K2_DG")
    e(f"s_cmp_gt_u32 s{S_M4}, {CAPF}")
    e("s_cbranch_scc1 K2_SLOW")
    e("s_cmp_lg_u32 s50, 0")
    e("s_cbranch_scc1 K2_SLOW")
    def place(slots, ent, addr, rank, cb8):
        for k in slots: e(f"ds_read_b32 v{addr+k}, v{addr+k} offset:256")
    e("s_movk_i32 s46, 0x5000")
    e("v_lshrrev_b32 v26, 2, v0")
    e("v_mul_u32_u24 v30, s46, v26")
    e("v_add_u32 v31, 0x280000, v30")
    for k in range(16): e(f"ds_read_b32 v{64+k}, v{64+k} offset:256")
    e(f"v_mov_b32 v7, {KONE:#x}")
    def put(k, ent, base16, rank, cb):
        e(f"v_bfe_u32 v8, v{ent}, 6, 14")
        e(f"v_lshrrev_b32 v9, 20, v{ent}")
        e(f"v_bfe_i32 v12, v{ent}, 0, 1")
        e(f"v_lshl_add_u32 v9, v9, 3, v{cb}")
        e(f"v_and_b32 v11, v7, v12")
        e(f"v_lshl_add_u32 v12, v{rank}, 4, v{base16}")
        e(f"v_xor_b32 v10, v7, v11")
        e(f"ds_write_b128 v12, v[8:11]")
    e("s_waitcnt lgkmcnt(0)")
    for gi,(k0,rem,off) in enumerate(groups):
        for j in range(4):
            e(f"v_cmpx_lt_i32 vcc, {off+j}, v{rem}")
            if j==0: e(f"s_cbranch_execz K2_P{gi}")
            put(k0+j, 32+k0+j, 64+k0+j, 96+k0+j, 30 if gi<2 else 31)
        e.label(f"K2_P{gi}")
        e("s_mov_b64 exec, -1")
    def lane_consts():
        e("v_and_b32 v2, 31, v1")
        e("v_lshrrev_b32 v3, 5, v1")
        e(f"s_lshl_b32 s{S_GB}, s{S_W}, 12")
        e(f"s_add_u32 s{S_GB}, s{S_GB}, {L_GBUF}")
        e("v_bfe_u32 v4, v2, 1, 3")
        e("v_lshlrev_b32 v5, 2, v3")
        e("v_lshlrev_b32 v6, 7, v2")
        e(f"v_add_u32 v6, s{S_GB}, v6")
        for s_ in range(4):
            e(f"v_add_u32 v8, {s_}, v5")
            e("v_xor_b32 v8, v8, v4")
            e(f"v_lshl_add_u32 v{AR+s_}, v8, 4, v6")
        e("v_and_b32 v4, 7, v1")
        e("v_lshrrev_b32 v5, 4, v1")
        e("v_xor_b32 v4, v4, v5")
        e(f"v_lshlrev_b32 v{IX+1}, 4, v4")
        e(f"v_xor_b32 v{IX+3}, 64, v{IX+1}")
        e(f"v_mov_b32 v{IX+5}, v{IX+1}")
        e(f"v_mov_b32 v{IX+7}, v{IX+3}")
        e("v_lshrrev_b32 v4, 3, v1")
        e("v_and_b32 v5, 3, v4")
        e("v_lshrrev_b32 v4, 2, v4")
        e("v_lshl_add_u32 v4, v5, 1, v4")
        e(f"v_lshlrev_b32 v{V_LI}, 4, v4")
        e("v_lshrrev_b32 v4, 3, v2")
        e("v_lshlrev_b32 v4, 3, v4")
        e("v_and_b32 v5, 3, v2")
        e("v_lshl_add_u32 v4, v5, 1, v4")
        e("v_bfe_u32 v5, v2, 2, 1")
        e("v_add_u32 v4, v4, v5")
        e(f"v_lshlrev_b32 v{V_LE}, 4, v4")
        e("v_lshlrev_b32 v4, 2, v2")
        e(f"v_add_u32 v{V_QC}, {L_QPK}, v4")
        e(f"v_add_u32 v{V_HC}, {L_HSUM}, v4")
        e(f"v_mov_b32 v{V_ONE}, 1.0")
        e(f"v_mov_b32 v{V_ONE+1}, 1.0")
        e(f"s_mov_b32 s{S_THR}, {f2u(2.0**80):#x}")
    lane_consts()
    def tile_range():
        e(f"s_add_u32 s46, s{S_M4}, 31")
        e("s_lshr_b32 s46, s46, 5")
        e("s_lshr_b32 s47, s46, 3")
        e("s_and_b32 s46, s46, 7")
        e(f"s_mul_i32 s{S_T}, s47, s{S_W}")
        e(f"s_min_u32 s48, s46, s{S_W}")
        e(f"s_add_u32 s{S_T}, s{S_T}, s48")
        e(f"s_add_u32 s{S_TE}, s{S_T}, s47")
        e(f"s_cmp_lt_u32 s{S_W}, s46")
        e(f"s_addc_u32 s{S_TE}, s{S_TE}, 0")
    tile_range()
    e(f"s_mov_b64 s[{S_FL}:{S_FL+1}], 0")
    e(f"s_mov_b32 s{S_MODE}, 0")
    e("s_waitcnt lgkmcnt(0)")
    e("s_barrier")
    e(f"s_cmp_ge_u32 s{S_T}, s{S_TE}")
    e("s_cbranch_scc1 K2_LOOPDONE")
    e(f"s_lshl_b32 s46, s{S_T}, 9")
    if L_LIST: e(f"s_add_u32 s46, s46, {L_LIST}")
    e(f"v_add_u32 v{V_LI}, s46, v{V_LI}")
    e(f"v_add_u32 v{V_LE}, s46, v{V_LE}")
    for s_ in rd_idx()+rd_ent(): e(s_)
    e(f"s_lshl_b32 s40, s{S_T}, 5")
    for s_ in desc_ops(None): e(s_)
    e(f"v_add_u32 v{V_LI}, 0x200, v{V_LI}")
    e(f"v_add_u32 v{V_LE}, 0x200, v{V_LE}")
    e("s_waitcnt lgkmcnt(0)")
    for g in dma():
        for s_ in g: e(s_)
    e(egather())
    e(f"v_add_u32 v{V_QE}, s{S_OEN}, v{V_QC}")
    e(f"v_add_u32 v{V_QO}, s{S_OON}, v{V_QC}")
    e(f"s_mov_b32 s{S_KB}, s{S_KBN}")
    e(f"s_mov_b32 s{S_OA}, s{S_OAN}")
    e(f"s_mov_b32 s{S_OB}, s{S_OBN}")
    for blk in range(4):
        e(f"v_mov_b32 v{Nn[blk]}, 0"); e(f"v_mov_b32 v{Nn[blk]+1}, 0")
        e(f"v_mov_b32 v{Pp[blk]}, 1.0"); e(f"v_mov_b32 v{Pp[blk]+1}, 1.0")
    e("s_waitcnt vmcnt(0)")
    for s_ in rd_A()+mvF()+rd_Q()+rd_idx()+rd_ent(): e(s_)
    e(f"v_add_u32 v{V_LI}, 0x200, v{V_LI}")
    e(f"v_add_u32 v{V_LE}, 0x200, v{V_LE}")
    e("s_waitcnt lgkmcnt(0)")
    for st in range(5): e(mfma(0,st,D[0]))
    for g in dma():
        for s_ in g: e(s_)
    e(egather())
    e("s_branch K2_DISP")
    e.label("K2_NEXT")
    e(f"s_add_u32 s{S_T}, s{S_T}, 1")
    e(f"s_cmp_ge_u32 s{S_T}, s{S_TE}")
    e("s_cbranch_scc1 K2_FLUSH")
    e(f"s_mov_b32 s{S_KB}, s{S_KBN}")
    e(f"s_mov_b32 s{S_OA}, s{S_OAN}")
    e(f"s_mov_b32 s{S_OB}, s{S_OBN}")
    e.label("K2_DISP")
    e(f"s_cmp_lt_u32 s{S_KB}, 4")
    e("s_cbranch_scc1 K2_DL")
    e(f"s_cmp_lt_u32 s{S_KB}, 6")
    e("s_cbranch_scc1 K2_D45")
    e(f"s_cmp_eq_u32 s{S_KB}, 6")
    e("s_cbranch_scc1 K2_V6")
    e(f"s_cmp_eq_u32 s{S_KB}, 7")
    e("s_cbranch_scc1 K2_V7")
    e.label("K2_V8"); tile_body(e,8); e("s_branch K2_NEXT")
    e.label("K2_D45")
    e(f"s_cmp_eq_u32 s{S_KB}, 4")
    e("s_cbranch_scc1 K2_V4")
    e.label("K2_V5"); tile_body(e,5); e("s_branch K2_NEXT")
    e.label("K2_DL")
    e(f"s_cmp_lt_u32 s{S_KB}, 2")
    e("s_cbranch_scc1 K2_D01")
    e(f"s_cmp_eq_u32 s{S_KB}, 2")
    e("s_cbranch_scc1 K2_V2")
    e.label("K2_V3"); tile_body(e,3); e("s_branch K2_NEXT")
    e.label("K2_D01")
    e(f"s_cmp_eq_u32 s{S_KB}, 0")
    e("s_cbranch_scc1 K2_V0")
    e.label("K2_V1"); tile_body(e,1); e("s_branch K2_NEXT")
    for kb in (0,2,4,6,7):
        e.label(f"K2_V{kb}"); tile_body(e,kb); e("s_branch K2_NEXT")
    e.label("K2_FLUSH")
    e(f"v_add_u32 v{V_HA}, s{S_OB}, v{V_HC}")
    for blk in range(4):
        for s_ in finalize(Nn[blk],Pp[blk],blk,mid=["s_nop 0"]): e(s_)
    e.label("K2_LOOPDONE")
    e(f"s_cmp_eq_u64 s[{S_FL}:{S_FL+1}], 0")
    e("s_cbranch_scc1 K2_NOV")
    e(f"v_mov_b32 v5, {L_FLAG}")
    e("v_mov_b32 v6, 1")
    e("ds_write_b32 v5, v6 offset:4")
    e.label("K2_NOV")
    e("s_waitcnt vmcnt(0) lgkmcnt(0)")
    e("s_barrier")
    e(f"v_mov_b32 v5, {L_FLAG}")
    e("ds_read_b32 v6, v5 offset:4")
    e("s_waitcnt lgkmcnt(0)")
    e("v_readfirstlane_b32 s46, v6")
    e("s_cmp_eq_u32 s46, 0")
    e("s_cbranch_scc1 K2_EPI")
    e("s_barrier")
    zero_hsum("K2_ZH1")
    e("s_waitcnt lgkmcnt(0)")
    e("s_barrier")
    tile_range()
    lane_consts()
    e(f"s_mov_b32 s{S_MODE}, 0")
    e("s_branch K2_SAFE")
    e.label("K2_SLOW")
    lane_consts()
    e(f"s_mov_b32 s{S_MODE}, 1")
    e("s_mov_b32 s66, 0")
    e("s_barrier")
    e(f"s_cmp_lg_u32 s{S_W}, 0")
    e("s_cbranch_scc1 K2_SR")
    e(f"v_lshlrev_b32 v4, 2, v1")
    e(f"v_add_u32 v4, {L_DEG}, v4")
    e("v_mov_b32 v5, 0")
    e("ds_write_b32 v4, v5")
    e.label("K2_SR")
    e("s_cmp_ge_u32 s66, 500")
    e("s_cbranch_scc1 K2_EPI0")
    e("s_lshr_b32 s67, s66, 1")
    e("s_lshl_b32 s46, s2, 8")
    e("s_add_u32 s46, s46, s67")
    e("s_lshl_b32 s46, s46, 2")
    e(f"s_add_u32 s46, s46, {WS_PACKT}")
    e("v_mov_b32 v4, s46")
    e(f"buffer_load_dword v5, v4, s[{S_WS}:{S_WS+3}], 0 offen")
    e("s_waitcnt vmcnt(0)")
    e("v_readfirstlane_b32 s68, v5")
    e("s_nop 3")
    e("s_lshr_b32 s69, s68, 16")
    e("s_and_b32 s68, s68, 0xffff")
    e("s_and_b32 s46, s66, 1")
    e("s_mul_i32 s46, s46, 1280")
    e("s_add_u32 s66, s66, 1")
    e("s_cmp_le_u32 s69, s46")
    e("s_cbranch_scc1 K2_SR")
    e("s_sub_u32 s69, s69, s46")
    e("s_min_u32 s69, s69, 1280")
    e("s_add_u32 s68, s68, s46")
    e("s_waitcnt lgkmcnt(0)")
    e("s_barrier")
    lds_init(False)
    e("s_mul_i32 s46, s67, 2560")
    e("s_add_u32 s46, s46, s68")
    e("s_lshl_b32 s46, s46, 2")
    e("v_lshlrev_b32 v4, 2, v0")
    e(f"buffer_load_dword v32, v4, s[{S_WS}:{S_WS+3}], s46 offen")
    e(f"buffer_load_dword v33, v4, s[{S_WS}:{S_WS+3}], s46 offen offset:2048")
    e("v_add_u32 v5, 0x1000, v4")
    e(f"buffer_load_dword v34, v5, s[{S_WS}:{S_WS+3}], s46 offen")
    e("v_sub_u32 v28, s69, v0")
    e("s_waitcnt vmcnt(0) lgkmcnt(0)")
    e("s_barrier")
    e("v_mov_b32 v7, 1")
    e(f"s_mov_b32 s46, {L_CNT}")
    for k in range(3):
        e(f"v_and_b32 v{64+k}, 63, v{32+k}")
        e(f"v_lshl_add_u32 v{64+k}, v{64+k}, 2, s46")
    e("s_movk_i32 s47, 512")
    e("s_movk_i32 s48, 1024")
    for k,th in ((0,"0"),(1,"s47"),(2,"s48")):
        e(f"v_cmpx_lt_i32 vcc, {th}, v28")
        e(f"ds_add_rtn_u32 v{96+k}, v{64+k}, v7")
    e("s_mov_b64 exec, -1")
    e("s_waitcnt lgkmcnt(0)")
    e("s_barrier")
    node_scan(False)
    e(f"s_cmp_lg_u32 s{S_W}, 0")
    e("s_cbranch_scc1 K2_DG2")
    e("ds_add_u32 v4, v5 offset:512")
    e.label("K2_DG2")
    e("s_mul_i32 s46, s67, 20480")
    e("v_mov_b32 v30, s46")
    for k in range(3): e(f"ds_read_b32 v{64+k}, v{64+k} offset:256")
    e(f"v_mov_b32 v7, {KONE:#x}")
    e("s_movk_i32 s47, 512")
    e("s_movk_i32 s48, 1024")
    e("s_waitcnt lgkmcnt(0)")
    for k,th in ((0,"0"),(1,"s47"),(2,"s48")):
        e(f"v_cmpx_lt_i32 vcc, {th}, v28")
        put(k, 32+k, 64+k, 96+k, 30)
    e("s_mov_b64 exec, -1")
    lane_consts()
    tile_range()
    e("s_waitcnt lgkmcnt(0)")
    e("s_barrier")
    e.label("K2_SAFE")
    e(f"s_cmp_ge_u32 s{S_T}, s{S_TE}")
    e("s_cbranch_scc1 K2_SAFEDONE")
    e(f"s_lshl_b32 s46, s{S_T}, 9")
    if L_LIST: e(f"s_add_u32 s46, s46, {L_LIST}")
    e(f"v_add_u32 v{V_LI}, s46, v{V_LI}")
    e(f"v_add_u32 v{V_LE}, s46, v{V_LE}")
    e.label("K2_SFL")
    for s_ in rd_idx()+rd_ent(): e(s_)
    e(f"s_lshl_b32 s40, s{S_T}, 5")
    for s_ in desc_ops(None): e(s_)
    e(f"v_add_u32 v{V_LI}, 0x200, v{V_LI}")
    e(f"v_add_u32 v{V_LE}, 0x200, v{V_LE}")
    e("s_waitcnt lgkmcnt(0)")
    for g in dma():
        for s_ in g: e(s_)
    e(egather())
    e(f"v_add_u32 v{V_QE}, s{S_OEN}, v{V_QC}")
    e(f"v_add_u32 v{V_QO}, s{S_OON}, v{V_QC}")
    e("s_waitcnt vmcnt(0)")
    for s_ in rd_A()+mvF()+rd_Q(): e(s_)
    e("s_waitcnt lgkmcnt(0)")
    for blk in range(4):
        for st in range(5): e(mfma(blk,st,D[0]))
        e("s_nop 7"); e("s_nop 7")
        for j in range(8):
            e(f"s_cmp_lt_u32 {j}, s{S_KBN}")
            e(f"s_cselect_b32 s46, s{S_OAN}, s{S_OBN}")
            e(f"v_add_u32 v{V_HA}, s46, v{V_HC}")
            for u in range(2):
                z=D[0]+2*j+u
                e(f"v_exp_f32 v{T+u}, v{z}")
            e("s_nop 0")
            for u in range(2): e(f"v_add_f32 v{T+u}, 1.0, v{T+u}")
            for u in range(2): e(f"v_rcp_f32 v{T+u}, v{T+u}")
            e("s_nop 0")
            for u in range(2): e(f"v_mul_f32 v{T+u}, v{D[0]+2*j+u}, v{T+u}")
            e(f"v_add_f32 v{TM}, v{T}, v{T+1}")
            e(f"ds_add_f32 v{V_HA}, v{TM} offset:{128*blk}")
    e(f"s_add_u32 s{S_T}, s{S_T}, 1")
    e(f"s_cmp_lt_u32 s{S_T}, s{S_TE}")
    e("s_cbranch_scc1 K2_SFL")
    e.label("K2_SAFEDONE")
    e(f"s_cmp_eq_u32 s{S_MODE}, 1")
    e("s_cbranch_scc1 K2_SR")
    e.label("K2_EPI0")
    e("s_waitcnt vmcnt(0) lgkmcnt(0)")
    e("s_barrier")
    e.label("K2_EPI")
    e(f"s_cmp_ge_u32 s{S_W}, 4")
    e("s_cbranch_scc1 K2_E1")
    e(f"s_and_b32 s46, s{S_W}, 1")
    e("s_lshl_b32 s47, s46, 13")
    e(f"s_add_u32 s47, s47, {WS_FRAG+36*1024}")
    e("v_lshlrev_b32 v4, 4, v1")
    for s_ in range(8):
        if s_==4: e("s_add_u32 s47, s47, 4096")
        e(f"buffer_load_dwordx4 {q4(W+4*s_)}, v4, s[{S_WS}:{S_WS+3}], s47 offen offset:{1024*(s_&3)}")
    srd(e,56,60,61,128)
    e("s_lshl_b32 s47, s46, 6")
    e("v_and_b32 v2, 31, v1")
    e("v_lshlrev_b32 v5, 1, v2")
    e("buffer_load_ushort v24, v5, s[56:59], s47 offen")
    e.label("K2_E1")
    e(f"s_mov_b32 s46, {f2u(-0.6931471805599453):#x}")
    e("v_lshlrev_b32 v4, 4, v0")
    e(f"v_add_u32 v4, {L_HSUM}, v4")
    e("ds_read_b128 v[32:35], v4")
    e("ds_read_b128 v[36:39], v4 offset:8192")
    e("ds_read_b128 v[40:43], v4 offset:16384")
    e("v_lshrrev_b32 v5, 5, v0")
    e("v_and_b32 v6, 31, v0")
    e("v_lshlrev_b32 v6, 3, v6")
    e(f"s_movk_i32 s47, {PL_STRIDE}")
    e("v_mad_u32_u24 v5, v5, s47, v6")
    e("s_waitcnt lgkmcnt(0)")
    def conv(b, off):
        for u in range(4): e(f"v_mul_f32 v{b+u}, s46, v{b+u}")
        e(f"v_cvt_pk_bf16_f32 v44, v{b}, v{b+1}")
        e(f"v_cvt_pk_bf16_f32 v45, v{b+2}, v{b+3}")
        e(f"ds_write_b64 v5, v[44:45] offset:{L_PHI+off}")
        e("v_lshlrev_b32 v46, 16, v44"); e("v_and_b32 v47, 0xffff0000, v44")
        e("v_lshlrev_b32 v48, 16, v45"); e("v_and_b32 v49, 0xffff0000, v45")
        for u in range(4): e(f"v_sub_f32 v{b+u}, v{b+u}, v{46+u}")
        e(f"v_cvt_pk_bf16_f32 v50, v{b}, v{b+1}")
        e(f"v_cvt_pk_bf16_f32 v51, v{b+2}, v{b+3}")
        e(f"ds_write_b64 v5, v[50:51] offset:{L_PLO+off}")
    conv(32,0)
    conv(36,16*PL_STRIDE)
    e("v_cmp_gt_u32 vcc, 256, v0")
    e("s_and_saveexec_b64 s[48:49], vcc")
    e("s_cbranch_execz K2_E2")
    conv(40,32*PL_STRIDE)
    e.label("K2_E2")
    e("s_mov_b64 exec, s[48:49]")
    e("s_waitcnt lgkmcnt(0)")
    e("s_barrier")
    e(f"s_cmp_ge_u32 s{S_W}, 4")
    e("s_cbranch_scc1 K2_END")
    e("v_and_b32 v2, 31, v1")
    e("v_lshrrev_b32 v3, 5, v1")
    e(f"s_lshr_b32 s46, s{S_W}, 1")
    e("s_lshl_b32 s48, s46, 5")
    e("v_add_u32 v4, s48, v2")
    e(f"s_movk_i32 s47, {PL_STRIDE}")
    e("v_mul_u32_u24 v4, s47, v4")
    e("v_lshl_add_u32 v4, v3, 4, v4")
    for s_ in range(8): e(f"ds_read_b128 {q4(32+4*s_)}, v4 offset:{L_PHI+32*s_}")
    for s_ in range(8): e(f"ds_read_b128 {q4(64+4*s_)}, v4 offset:{L_PLO+32*s_}")
    e("v_lshlrev_b32 v5, 4, v3")
    e("s_lshl_b32 s48, s48, 2")
    e(f"s_add_u32 s48, s48, {L_DEG}")
    e("v_add_u32 v5, s48, v5")
    for g in range(4): e(f"ds_read_b128 {q4(96+4*g)}, v5 offset:{32*g}")
    e("s_waitcnt vmcnt(0) lgkmcnt(0)")
    for s_ in range(8):
        c="0" if s_==0 else "v[112:127]"
        e(f"v_mfma_f32_32x32x16_bf16 v[112:127], {q4(32+4*s_)}, {q4(W+4*s_)}, {c}")
    for s_ in range(8):
        e(f"v_mfma_f32_32x32x16_bf16 v[112:127], {q4(64+4*s_)}, {q4(W+4*s_)}, v[112:127]")
    e("v_lshlrev_b32 v24, 16, v24")
    for r in range(16): e(f"v_cvt_f32_u32 v{96+r}, v{96+r}")
    srd(e,S_XR,62,63,N_NODES*128)
    e(f"s_lshl_b32 s48, s46, 5")
    e(f"s_add_u32 s48, s48, s{S_N0}")
    e("s_lshl_b32 s48, s48, 7")
    e(f"s_and_b32 s49, s{S_W}, 1")
    e("s_lshl_b32 s49, s49, 6")
    e("s_add_u32 s48, s48, s49")
    e("v_lshlrev_b32 v6, 1, v2")
    e("v_lshl_add_u32 v6, v3, 9, v6")
    e("s_lshl_b32 s49, s46, 5")
    e(f"s_sub_u32 s49, s{S_NN}, s49")
    e("v_lshlrev_b32 v7, 2, v3")
    e("v_sub_u32 v7, s49, v7")
    e("s_nop 7")
    for r in range(16):
        e(f"v_fma_f32 v{112+r}, v{96+r}, v24, v{112+r}")
    for r in range(16):
        e(f"v_cvt_pk_bf16_f32 v{112+r}, v{112+r}, v{112+r}")
    for r in range(16):
        ro=(r&3)+8*(r>>2)
        e(f"v_cmpx_lt_i32 vcc, {ro}, v7")
        e(f"buffer_store_short v{112+r}, v6, s[{S_XR}:{S_XR+3}], s48 offen offset:{128*ro}")
    e.label("K2_END")
    e("s_endpgm")
    return e.text(), NV, 80
```

```python
import sys
from common import *
import k1, k2, importlib
def build(path):
    t1,v1,s1=k1.gen_k1()
    t2,v2,s2=k2.gen_k2()
    hdr=open('standalone__edge_featured_mpnn_mpnn__graph.s.ref').read().split("; Override")[0]
    s=hdr
    s+=f"; @launch kernel=sort_kernel grid=(256,1,1) block=(640,1,1) lds={k1.K1_LDS}\n"
    s+=f"; @launch kernel=main_kernel grid=(256,1,1) block=(512,1,1) lds={k2.K2_LDS}\n"
    s+='.amdgcn_target "amdgcn-amd-amdhsa--gfx950"\n.text\n'
    s+=".globl sort_kernel\n.p2align 8\n.type sort_kernel,@function\n"+t1
    s+=".globl main_kernel\n.p2align 8\n.type main_kernel,@function\n"+t2
    s+=kdesc("sort_kernel",v1,s1).replace(".text\n","")
    s+=kdesc("main_kernel",v2,s2).replace(".text\n","")
    open(path,'w').write(s)
if __name__=="__main__":
    if len(sys.argv)>2 and sys.argv[2]=="stamp": k2.STAMP=True; k1.STAMP=True
    if len(sys.argv)>3: k2.ABL.update(sys.argv[3].split(",")); k1.ABL.update(sys.argv[3].split(","))
    build(sys.argv[1] if len(sys.argv)>1 else 'standalone__edge_featured_mpnn_mpnn__graph.s')
```

```python
from common import *
L_LIST=0; CAPF=3072; LIST_N=3136
L_QPK=50176
L_GBUF=70656
L_HSUM=103424
L_STG=L_HSUM
L_CNT=144384; L_BASE16=L_CNT+256; L_DEG=L_CNT+512; L_FLAG=L_CNT+768
K2_LDS=145408
PL_STRIDE=272; L_PHI=0; L_PLO=64*PL_STRIDE
V_TID=0; V_LANE=1
D=[32,48]; EE=64
Nn=[80,82,84,86]; Pp=[88,90,92,94]
AX=96; F=112; FN=116
PT=120; R=122; T=124; TM=126; TM2=127
W=128; W5=192
IX=208
AR=216
V_LI=220; V_LE=221; V_QC=222; V_QE=223; V_QO=224; V_HC=225; V_HA=226; V_BASE=227
V_ONE=228
NV=232
S_XS=4; S_EA=8; S_WS=12; S_XR=16
S_W=20; S_N0=21; S_NN=22; S_T=23; S_TE=24
S_KB=25; S_OA=26; S_OB=27; S_KBN=28; S_OAN=29; S_OBN=30; S_OEN=31; S_OON=32
S_FL=34; S_GB=36; S_THR=37; S_MODE=38; S_M4=39
NULL_SRC=0x3fff; NULL_EOFF=0x7ffffff0; KONE=0x3f803f80
ABL=set()
def pr(x): return f"v[{x}:{x+1}]"
def q4(x): return f"v[{x}:{x+3}]"

def desc_ops(tau_s):
    return [
     "s_add_u32 s41, s40, 31",
     f"v_cmp_ge_u32 vcc, s41, v{V_BASE}",
     "s_bcnt1_i32_b64 s42, vcc",
     "s_sub_u32 s42, s42, 1",
     "s_max_i32 s42, s42, 0",
     f"v_readlane_b32 s43, v{V_BASE}, s42",
     "s_sub_u32 s49, s42, 1",
     "s_max_i32 s49, s49, 0",
     f"s_lshl_b32 s{S_OBN}, s42, 9",
     "s_sub_i32 s44, s43, s40",
     "s_lshr_b32 s45, s44, 2",
     "s_sub_i32 s46, 0, s44",
     "s_and_b32 s47, s46, 0x60",
     "s_cselect_b32 s47, 8, 0",
     "s_cmp_lt_u32 s46, 128",
     "s_cselect_b32 s47, 8, s47",
     "s_cmp_ge_i32 s44, 0",
     f"s_cselect_b32 s{S_KBN}, s45, s47",
     "s_cselect_b32 s49, s49, s42",
     f"s_lshl_b32 s{S_OAN}, s49, 9",
     "s_bitcmp1_b32 s49, 0",
     f"s_cselect_b32 s{S_OEN}, s{S_OBN}, s{S_OAN}",
     f"s_cselect_b32 s{S_OON}, s{S_OAN}, s{S_OBN}",
    ]
def mfma(blk, step, d):
    a = q4(AX+4*step) if step<4 else q4(F)
    b = q4(W+16*blk+4*step) if step<4 else q4(W5+4*blk)
    c = "0" if step==0 else f"v[{d}:{d+15}]"
    return f"v_mfma_f32_32x32x16_bf16 v[{d}:{d+15}], {a}, {b}, {c}"
def rd_A():
    return [f"ds_read_b128 {q4(AX+4*s)}, v{AR+s}" for s in range(4)]
def rd_Q():
    L=[]
    for blk in range(4):
        L.append(f"ds_read_b32 v{W5+4*blk+2}, v{V_QE} offset:{128*blk}")
        L.append(f"ds_read_b32 v{W5+4*blk+3}, v{V_QO} offset:{128*blk}")
    return L
def rd_idx():
    return [f"ds_read_b32 v{IX+2*q}, v{V_LI} offset:{128*q}" for q in range(4)]
def rd_ent(): return [f"ds_read_b128 {q4(FN)}, v{V_LE}"]
def dma():
    L=[]
    for q in range(4):
        L.append([f"s_add_u32 m0, s{S_GB}, {1024*q}", "s_nop 0", f"buffer_load_dwordx4 {pr(IX+2*q)}, s[{S_XS}:{S_XS+3}], 0 idxen offen lds"])
    return L
def egather(): return f"buffer_load_dwordx2 {pr(FN)}, v{FN+1}, s[{S_EA}:{S_EA+3}], 0 offen"
def mvF(): return [f"v_pk_mov_b32 {pr(F)}, {pr(FN)}, {pr(FN)} op_sel:[0,1]", f"v_pk_mov_b32 {pr(F+2)}, {pr(FN+2)}, {pr(FN+2)} op_sel:[0,1]"]
def finalize(n, p, blk, mid=None):
    L=[f"v_rcp_f32 v{R}, v{p}", f"v_rcp_f32 v{R+1}, v{p+1}",
       f"v_max_f32 v{TM}, v{p}, v{p+1}",
       f"v_cmp_lt_f32 vcc, s{S_THR}, v{TM}"]
    if mid: L+=mid
    L+=[f"v_pk_mul_f32 {pr(T)}, {pr(n)}, {pr(R)}",
        f"s_or_b64 s[{S_FL}:{S_FL+1}], s[{S_FL}:{S_FL+1}], vcc",
        f"v_add_f32 v{TM2}, v{T}, v{T+1}",
        f"v_cvt_f64_f32 {pr(T)}, v{TM2}",
        f"ds_add_f64 v{V_HA}, {pr(T)} offset:{256*blk}"]
    return L
def pk_run(blk, kb):
    z=D[blk&1]; n=Nn[blk]; ph=Pp[blk]
    L=[]; pc=ph; nz=None
    for j in range(8):
        e=EE+2*j; zj=z+2*j
        last=(j==7)
        if j==kb:
            dst = ph if last else (PT if pc==ph else ph)
            if last and pc==ph:
                L+=finalize(n,pc,blk)
                L.append(f"v_pk_add_f32 {pr(ph)}, {pr(e)}, {pr(V_ONE)}")
            else:
                L+=finalize(n,pc,blk,mid=[f"v_pk_add_f32 {pr(dst)}, {pr(e)}, {pr(V_ONE)}"])
            pc=dst
            if last: L.append(f"v_pk_mov_b32 {pr(n)}, {pr(zj)}, {pr(zj)} op_sel:[0,1]")
            else: nz=zj
        else:
            src = nz if nz is not None else n
            nz=None
            dst = ph if last else (PT if pc==ph else ph)
            if dst==pc:
                L.append(f"v_pk_fma_f32 {pr(n)}, {pr(src)}, {pr(e)}, {pr(src)}")
                L.append(f"v_pk_fma_f32 {pr(n)}, {pr(zj)}, {pr(pc)}, {pr(n)}")
                L.append(f"v_pk_fma_f32 {pr(pc)}, {pr(pc)}, {pr(e)}, {pr(pc)}")
            else:
                L.append(f"v_pk_fma_f32 {pr(n)}, {pr(src)}, {pr(e)}, {pr(src)}")
                L.append(f"v_pk_fma_f32 {pr(dst)}, {pr(pc)}, {pr(e)}, {pr(pc)}")
                L.append(f"v_pk_fma_f32 {pr(n)}, {pr(zj)}, {pr(pc)}, {pr(n)}")
            pc=dst
    assert pc==ph
    return L
def t_run(blk, side):
    z=D[blk&1]; nb=(blk+1)&3; d=D[(blk+1)&1]
    L=[]; side=list(side)
    for i in range(16):
        if i%3==0 and i<=12: L.append(mfma(nb,i//3,d))
        L.append(f"v_exp_f32 v{EE+i}, v{z+i}")
        if side:
            g=side.pop(0)
            L+= g if isinstance(g,list) else [g]
    for g in side: L+= g if isinstance(g,list) else [g]
    return L
def tile_body(e, kb):
    global ABL
    side=[f"s_lshl_b32 s40, s{S_T}, 5", "s_add_u32 s40, s40, 32"]+desc_ops(None)
    pre=[]
    if kb<8: pre.append(f"v_lshl_add_u32 v{V_HA}, s{S_OA}, 1, v{V_HC}")
    for s in pre: e(s)
    for s in t_run(0, side[:16]): e(s)
    for s in pk_run(0,kb): e(s)
    for s in t_run(1, side[16:]): e(s)
    e(f"v_add_u32 v{V_QE}, s{S_OEN}, v{V_QC}")
    e(f"v_add_u32 v{V_QO}, s{S_OON}, v{V_QC}")
    for s in pk_run(1,kb): e(s)
    for s in t_run(2, []): e(s)
    e("s_waitcnt vmcnt(0)")
    for s in rd_A(): e(s)
    for s in mvF(): e(s)
    for s in rd_Q(): e(s)
    for s in rd_idx(): e(s)
    for s in rd_ent(): e(s)
    e(f"v_add_u32 v{V_LI}, 0x200, v{V_LI}")
    e(f"v_add_u32 v{V_LE}, 0x200, v{V_LE}")
    for s in pk_run(2,kb): e(s)
    e("s_waitcnt lgkmcnt(0)")
    dm=dma()
    if 'nodma' in ABL: dm=[[],[],[],[]]
    eg=[] if 'noeg' in ABL else egather()
    for s in t_run(3, [[],dm[0],[],dm[1],[],dm[2],[],dm[3],[],eg]): e(s)
    for s in pk_run(3,kb): e(s)

STAMP=False
def gen_k2():
    e=Em()
    def stamp(i):
        if STAMP: e(f"s_memtime s[{70+2*i}:{71+2*i}]")
    e.label("main_kernel")
    e("s_cmp_ge_u32 s2, 256")
    e("s_cbranch_scc1 K2_END")
    stamp(0)
    e("s_load_dwordx4 s[40:43], s[0:1], 0")
    e("s_load_dwordx2 s[44:45], s[0:1], 40")
    e("s_load_dwordx4 s[60:63], s[0:1], 56")
    e("s_load_dwordx2 s[52:53], s[0:1], 80")
    e(f"v_and_b32 v{V_LANE}, 63, v0")
    e("v_lshrrev_b32 v2, 6, v0")
    e("s_mul_i32 s46, s2, 625")
    e(f"v_readfirstlane_b32 s{S_W}, v2")
    e("s_add_u32 s47, s46, 15")
    e(f"s_lshr_b32 s{S_N0}, s47, 4")
    e("s_add_u32 s47, s46, 640")
    e("s_lshr_b32 s47, s47, 4")
    e(f"s_sub_u32 s{S_NN}, s47, s{S_N0}")
    e("v_and_b32 v2, 31, v1")
    e("v_lshrrev_b32 v3, 5, v1")
    e("v_and_b32 v4, 0x1fc, v0")
    e("s_lshl_b32 s46, s2, 10")
    e(f"s_add_u32 s46, s46, {WS_PACKT}")
    e("s_waitcnt lgkmcnt(0)")
    srd(e,S_WS,52,53,WS_END)
    e(f"buffer_load_dword v5, v4, s[{S_WS}:{S_WS+3}], s46 offen")
    e(f"buffer_load_dword v6, v4, s[{S_WS}:{S_WS+3}], s46 offen offset:512")
    srd(e,S_XR,40,41,N_NODES*128)
    e(f"s_lshr_b32 s46, s{S_W}, 2")
    e("s_lshl_b32 s46, s46, 5")
    e(f"s_add_u32 s46, s46, s{S_N0}")
    e("s_lshl_b32 s46, s46, 7")
    e("v_lshlrev_b32 v7, 7, v2")
    e("v_lshl_add_u32 v7, v3, 6, v7")
    for s in range(4):
        e(f"buffer_load_dwordx4 {q4(8+4*s)}, v7, s[{S_XR}:{S_XR+3}], s46 offen offset:{16*s}")
    srd(e,56,44,45,256)
    e(f"s_and_b32 s47, s{S_W}, 3")
    e("s_lshl_b32 s47, s47, 6")
    e("v_lshlrev_b32 v24, 1, v2")
    e("buffer_load_ushort v24, v24, s[56:59], s47 offen")
    e("v_lshlrev_b32 v25, 4, v1")
    for i in range(5):
        if i<4: e(f"s_add_u32 s47, s{S_W}, {8*i}")
        else:
            e(f"s_and_b32 s47, s{S_W}, 3"); e("s_add_u32 s47, s47, 32")
        e("s_lshl_b32 s47, s47, 10")
        e(f"s_add_u32 m0, s47, {L_STG}")
        e(f"s_add_u32 s47, s47, {WS_FRAG}")
        e(f"buffer_load_dwordx4 v25, s[{S_WS}:{S_WS+3}], s47 offen lds")
    srd(e,S_XS,40,41,N_NODES,stride=128)
    srd(e,S_EA,42,43,E*8)
    def lds_init(first):
        e("v_lshlrev_b32 v26, 4, v0")
        e(f"v_mov_b32 v28, {NULL_SRC:#x}")
        e(f"v_mov_b32 v29, {NULL_EOFF:#x}")
        e("v_mov_b32 v30, 0")
        e("v_mov_b32 v31, 0")
        for i in range(6): e(f"ds_write_b128 v26, v[28:31] offset:{8192*i}")
        lab="K2_I%d"%(0 if first else 1)
        e("v_cmp_gt_u32 vcc, 64, v0")
        e("s_and_saveexec_b64 s[46:47], vcc")
        e(f"s_cbranch_execz {lab}")
        e("ds_write_b128 v26, v[28:31] offset:49152")
        e(f"v_lshlrev_b32 v27, 2, v0")
        e(f"v_add_u32 v27, {L_CNT}, v27")
        e("ds_write_b32 v27, v30")
        if first:
            e("ds_write_b32 v27, v30 offset:512")
            e("ds_write_b32 v27, v30 offset:768")
        e.label(lab)
        e("s_mov_b64 exec, s[46:47]")
    lds_init(True)
    def zero_hsum(lab):
        e("v_lshlrev_b32 v26, 4, v0")
        e(f"v_add_u32 v26, {L_HSUM}, v26")
        for r in (8,9,10,11): e(f"v_mov_b32 v{r}, 0")
        for i in range(5): e(f"ds_write_b128 v26, v[8:11] offset:{8192*i}")
    e("s_waitcnt vmcnt(10)")
    e("v_lshrrev_b32 v26, 2, v0")
    e("v_and_b32 v27, 3, v0")
    e("v_lshlrev_b32 v27, 2, v27")
    e("v_cmp_gt_u32 vcc, 122, v26")
    e("v_lshrrev_b32 v28, 16, v5")
    e("v_lshrrev_b32 v29, 16, v6")
    e("v_cndmask_b32 v29, 0, v29, vcc")
    e("v_and_b32 v5, 0xffff, v5")
    e("v_and_b32 v6, 0xffff, v6")
    e("s_movk_i32 s46, 2560")
    e("v_mad_u32_u24 v30, v26, s46, v5")
    e("v_add_u32 v31, 128, v26")
    e("v_mad_u32_u24 v31, v31, s46, v6")
    e("v_add_lshl_u32 v30, v30, v27, 2")
    e("v_add_lshl_u32 v31, v31, v27, 2")
    e("v_max_u32 v5, v28, v29")
    e("v_sub_u32 v28, v28, v27")
    e("v_sub_u32 v29, v29, v27")
    e(f"v_mov_b32 v6, {NULL_EOFF:#x}")
    e("v_cmp_lt_i32 vcc, 16, v28")
    e("v_cmp_lt_i32 s[46:47], 16, v29")
    e(f"buffer_load_dwordx4 v[32:35], v30, s[{S_WS}:{S_WS+3}], 0 offen")
    e(f"buffer_load_dwordx4 v[40:43], v31, s[{S_WS}:{S_WS+3}], 0 offen")
    e("v_cndmask_b32 v30, v6, v30, vcc")
    e("v_cndmask_b32 v31, v6, v31, s[46:47]")
    e(f"buffer_load_dwordx4 v[36:39], v30, s[{S_WS}:{S_WS+3}], 0 offen offset:64")
    e(f"buffer_load_dwordx4 v[44:47], v31, s[{S_WS}:{S_WS+3}], 0 offen offset:64")
    e("v_cmp_lt_u32 s[64:65], 32, v5")
    e("s_waitcnt vmcnt(4) lgkmcnt(0)")
    e("s_barrier")
    stamp(1)
    e("s_cmp_eq_u64 s[64:65], 0")
    e("s_cbranch_scc1 K2_NF")
    e(f"v_mov_b32 v5, {L_FLAG}")
    e("v_mov_b32 v6, 1")
    e("ds_write_b32 v5, v6")
    e.label("K2_NF")
    e("v_lshlrev_b32 v25, 4, v1")
    e(f"s_and_b32 s46, s{S_W}, 3")
    e("s_lshl_b32 s47, s46, 12")
    e(f"s_add_u32 s47, s47, {L_STG+20*1024}")
    e("v_add_u32 v26, s47, v25")
    for s_ in range(4): e(f"ds_read_b128 {q4(64+4*s_)}, v26 offset:{1024*s_}")
    e(f"v_add_u32 v27, {L_STG}, v25")
    e("s_waitcnt lgkmcnt(0)")
    for s_ in range(4):
        c="0" if s_==0 else "v[96:111]"
        e(f"v_mfma_f32_32x32x16_bf16 v[96:111], {q4(8+4*s_)}, {q4(64+4*s_)}, {c}")
    for f in range(16): e(f"ds_read_b128 {q4(W+4*f)}, v27 offset:{1024*f}")
    for blk in range(4): e(f"ds_read_b128 {q4(W5+4*blk)}, v27 offset:{1024*(16+blk)}")
    e(f"s_lshr_b32 s47, s{S_W}, 2")
    e("s_lshl_b32 s47, s47, 14")
    e("s_lshl_b32 s46, s46, 7")
    e("s_add_u32 s47, s47, s46")
    e(f"s_add_u32 s47, s47, {L_QPK}")
    e("v_lshlrev_b32 v26, 2, v2")
    e("v_lshl_add_u32 v26, v3, 11, v26")
    e("v_add_u32 v26, s47, v26")
    e("v_lshlrev_b32 v24, 16, v24")
    e(f"s_mov_b32 s46, {f2u(-LOG2E/2):#x}")
    def qrows(rs):
        for r in rs:
            e(f"v_add_f32 v{96+r}, v{96+r}, v24")
            e(f"v_mul_f32 v{96+r}, s46, v{96+r}")
        for r in rs:
            e(f"v_cvt_pk_bf16_f32 v{64+r}, v{96+r}, v{96+r}")
        for r in rs:
            e(f"v_lshlrev_b32 v{64+r}, 16, v{64+r}")
            e(f"v_sub_f32 v{64+r}, v{96+r}, v{64+r}")
        for r in rs:
            e(f"v_cvt_pk_bf16_f32 v{64+r}, v{96+r}, v{64+r}")
            e(f"ds_write_b32 v26, v{64+r} offset:{512*((r&3)+8*(r>>2))}")
    e("s_nop 7")
    e("s_nop 7")
    qrows(range(0,4))
    e(f"s_cmp_ge_u32 s{S_W}, 4")
    e("s_cbranch_scc1 K2_QD")
    qrows(range(4,16))
    e.label("K2_QD")
    e("s_waitcnt vmcnt(0)")
    e("v_mov_b32 v7, 1")
    e(f"s_mov_b32 s46, {L_CNT}")
    for k in range(16):
        e(f"v_and_b32 v{64+k}, 63, v{32+k}")
        e(f"v_lshl_add_u32 v{64+k}, v{64+k}, 2, s46")
    groups=[(0,28,0),(4,28,16),(8,29,0),(12,29,16)]
    for gi,(k0,rem,off) in enumerate(groups):
        for j in range(4):
            e(f"v_cmpx_lt_i32 vcc, {off+j}, v{rem}")
            if j==0: e(f"s_cbranch_execz K2_R{gi}")
            e(f"ds_add_rtn_u32 v{96+k0+j}, v{64+k0+j}, v7")
        e.label(f"K2_R{gi}")
        e("s_mov_b64 exec, -1")
    e("s_waitcnt lgkmcnt(0)")
    e("s_barrier")
    stamp(2)
    zero_hsum("K2_ZH0")
    def node_scan(first):
        e(f"v_lshlrev_b32 v4, 2, v1")
        e(f"v_add_u32 v4, {L_CNT}, v4")
        e("ds_read_b32 v5, v4")
        if first: e("ds_read_b32 v6, v4 offset:768")
        e("s_waitcnt lgkmcnt(0)")
        if first: e("v_readfirstlane_b32 s50, v6")
        e("v_add_u32 v6, 3, v5")
        e("v_and_b32 v6, -4, v6")
        e("v_max_u32 v6, 32, v6")
        e(f"v_cmp_gt_u32 vcc, s{S_NN}, v1")
        e("s_nop 1")
        e("v_cndmask_b32 v6, 0, v6, vcc")
        e("v_mov_b32 v26, v6")
        scan_incl(e,26)
        e("v_sub_u32 v27, v26, v6")
        e("s_nop 0")
        e(f"v_readlane_b32 s{S_M4}, v26, 63")
        e("v_lshlrev_b32 v30, 4, v27")
        if L_LIST: e(f"v_add_u32 v30, {L_LIST}, v30")
        e("ds_write_b32 v4, v30 offset:256")
        e(f"v_mov_b32 v{V_BASE}, 0x7fffffff")
        e(f"v_cndmask_b32 v{V_BASE}, v{V_BASE}, v27, vcc")
    node_scan(True)
    e(f"s_cmp_lg_u32 s{S_W}, 0")
    e("s_cbranch_scc1 K2_DG")
    e("ds_write_b32 v4, v5 offset:512")
    e.label("K2_DG")
    e(f"s_cmp_gt_u32 s{S_M4}, {CAPF}")
    e("s_cbranch_scc1 K2_SLOW")
    e("s_cmp_lg_u32 s50, 0")
    e("s_cbranch_scc1 K2_SLOW")
    def place(slots, ent, addr, rank, cb8):
        for k in slots: e(f"ds_read_b32 v{addr+k}, v{addr+k} offset:256")
    e("s_movk_i32 s46, 0x5000")
    e("v_lshrrev_b32 v26, 2, v0")
    e("v_mul_u32_u24 v30, s46, v26")
    e("v_add_u32 v31, 0x280000, v30")
    for k in range(16): e(f"ds_read_b32 v{64+k}, v{64+k} offset:256")
    e(f"v_mov_b32 v7, {KONE:#x}")
    def put(k, ent, base16, rank, cb):
        e(f"v_bfe_u32 v8, v{ent}, 6, 14")
        e(f"v_lshrrev_b32 v9, 20, v{ent}")
        e(f"v_bfe_i32 v12, v{ent}, 0, 1")
        e(f"v_lshl_add_u32 v9, v9, 3, v{cb}")
        e(f"v_and_b32 v11, v7, v12")
        e(f"v_lshl_add_u32 v12, v{rank}, 4, v{base16}")
        e(f"v_xor_b32 v10, v7, v11")
        e(f"ds_write_b128 v12, v[8:11]")
    e("s_waitcnt lgkmcnt(0)")
    for gi,(k0,rem,off) in enumerate(groups):
        for j in range(4):
            e(f"v_cmpx_lt_i32 vcc, {off+j}, v{rem}")
            if j==0: e(f"s_cbranch_execz K2_P{gi}")
            put(k0+j, 32+k0+j, 64+k0+j, 96+k0+j, 30 if gi<2 else 31)
        e.label(f"K2_P{gi}")
        e("s_mov_b64 exec, -1")
    def lane_consts():
        e("v_and_b32 v2, 31, v1")
        e("v_lshrrev_b32 v3, 5, v1")
        e(f"s_lshl_b32 s{S_GB}, s{S_W}, 12")
        e(f"s_add_u32 s{S_GB}, s{S_GB}, {L_GBUF}")
        e("v_bfe_u32 v4, v2, 1, 3")
        e("v_lshlrev_b32 v5, 2, v3")
        e("v_lshlrev_b32 v6, 7, v2")
        e(f"v_add_u32 v6, s{S_GB}, v6")
        for s_ in range(4):
            e(f"v_add_u32 v8, {s_}, v5")
            e("v_xor_b32 v8, v8, v4")
            e(f"v_lshl_add_u32 v{AR+s_}, v8, 4, v6")
        e("v_and_b32 v4, 7, v1")
        e("v_lshrrev_b32 v5, 4, v1")
        e("v_xor_b32 v4, v4, v5")
        e(f"v_lshlrev_b32 v{IX+1}, 4, v4")
        e(f"v_xor_b32 v{IX+3}, 64, v{IX+1}")
        e(f"v_mov_b32 v{IX+5}, v{IX+1}")
        e(f"v_mov_b32 v{IX+7}, v{IX+3}")
        e("v_lshrrev_b32 v4, 3, v1")
        e("v_and_b32 v5, 3, v4")
        e("v_lshrrev_b32 v4, 2, v4")
        e("v_lshl_add_u32 v4, v5, 1, v4")
        e(f"v_lshlrev_b32 v{V_LI}, 4, v4")
        e("v_lshrrev_b32 v4, 3, v2")
        e("v_lshlrev_b32 v4, 3, v4")
        e("v_and_b32 v5, 3, v2")
        e("v_lshl_add_u32 v4, v5, 1, v4")
        e("v_bfe_u32 v5, v2, 2, 1")
        e("v_add_u32 v4, v4, v5")
        e(f"v_lshlrev_b32 v{V_LE}, 4, v4")
        e("v_lshlrev_b32 v4, 2, v2")
        e(f"v_add_u32 v{V_QC}, {L_QPK}, v4")
        e("v_lshlrev_b32 v4, 3, v2")
        e(f"v_add_u32 v{V_HC}, {L_HSUM}, v4")
        e(f"v_mov_b32 v{V_ONE}, 1.0")
        e(f"v_mov_b32 v{V_ONE+1}, 1.0")
        e(f"s_mov_b32 s{S_THR}, {f2u(2.0**80):#x}")
    lane_consts()
    def tile_range():
        e(f"s_add_u32 s46, s{S_M4}, 31")
        e("s_lshr_b32 s46, s46, 5")
        e("s_lshr_b32 s47, s46, 3")
        e("s_and_b32 s46, s46, 7")
        e(f"s_mul_i32 s{S_T}, s47, s{S_W}")
        e(f"s_min_u32 s48, s46, s{S_W}")
        e(f"s_add_u32 s{S_T}, s{S_T}, s48")
        e(f"s_add_u32 s{S_TE}, s{S_T}, s47")
        e(f"s_cmp_lt_u32 s{S_W}, s46")
        e(f"s_addc_u32 s{S_TE}, s{S_TE}, 0")
    tile_range()
    e(f"s_mov_b64 s[{S_FL}:{S_FL+1}], 0")
    e(f"s_mov_b32 s{S_MODE}, 0")
    e("s_waitcnt lgkmcnt(0)")
    e("s_barrier")
    stamp(3)
    e(f"s_cmp_ge_u32 s{S_T}, s{S_TE}")
    e("s_cbranch_scc1 K2_LOOPDONE")
    e(f"s_lshl_b32 s46, s{S_T}, 9")
    if L_LIST: e(f"s_add_u32 s46, s46, {L_LIST}")
    e(f"v_add_u32 v{V_LI}, s46, v{V_LI}")
    e(f"v_add_u32 v{V_LE}, s46, v{V_LE}")
    for s_ in rd_idx()+rd_ent(): e(s_)
    e(f"s_lshl_b32 s40, s{S_T}, 5")
    for s_ in desc_ops(None): e(s_)
    e(f"v_add_u32 v{V_LI}, 0x200, v{V_LI}")
    e(f"v_add_u32 v{V_LE}, 0x200, v{V_LE}")
    e("s_waitcnt lgkmcnt(0)")
    for g in dma():
        for s_ in g: e(s_)
    e(egather())
    e(f"v_add_u32 v{V_QE}, s{S_OEN}, v{V_QC}")
    e(f"v_add_u32 v{V_QO}, s{S_OON}, v{V_QC}")
    e(f"s_mov_b32 s{S_KB}, s{S_KBN}")
    e(f"s_mov_b32 s{S_OA}, s{S_OAN}")
    e(f"s_mov_b32 s{S_OB}, s{S_OBN}")
    for blk in range(4):
        e(f"v_mov_b32 v{Nn[blk]}, 0"); e(f"v_mov_b32 v{Nn[blk]+1}, 0")
        e(f"v_mov_b32 v{Pp[blk]}, 1.0"); e(f"v_mov_b32 v{Pp[blk]+1}, 1.0")
    e("s_waitcnt vmcnt(0)")
    for s_ in rd_A()+mvF()+rd_Q()+rd_idx()+rd_ent(): e(s_)
    e(f"v_add_u32 v{V_LI}, 0x200, v{V_LI}")
    e(f"v_add_u32 v{V_LE}, 0x200, v{V_LE}")
    e("s_waitcnt lgkmcnt(0)")
    for st in range(5): e(mfma(0,st,D[0]))
    for g in dma():
        for s_ in g: e(s_)
    e(egather())
    stamp(4)
    e("s_branch K2_DISP")
    e.label("K2_NEXT")
    e(f"s_add_u32 s{S_T}, s{S_T}, 1")
    e(f"s_cmp_ge_u32 s{S_T}, s{S_TE}")
    e("s_cbranch_scc1 K2_FLUSH")
    e(f"s_mov_b32 s{S_KB}, s{S_KBN}")
    e(f"s_mov_b32 s{S_OA}, s{S_OAN}")
    e(f"s_mov_b32 s{S_OB}, s{S_OBN}")
    e.label("K2_DISP")
    if 'kb8' in ABL: e("s_branch K2_V8")
    e(f"s_cmp_lt_u32 s{S_KB}, 4")
    e("s_cbranch_scc1 K2_DL")
    e(f"s_cmp_lt_u32 s{S_KB}, 6")
    e("s_cbranch_scc1 K2_D45")
    e(f"s_cmp_eq_u32 s{S_KB}, 6")
    e("s_cbranch_scc1 K2_V6")
    e(f"s_cmp_eq_u32 s{S_KB}, 7")
    e("s_cbranch_scc1 K2_V7")
    e.label("K2_V8"); tile_body(e,8); e("s_branch K2_NEXT")
    e.label("K2_D45")
    e(f"s_cmp_eq_u32 s{S_KB}, 4")
    e("s_cbranch_scc1 K2_V4")
    e.label("K2_V5"); tile_body(e,5); e("s_branch K2_NEXT")
    e.label("K2_DL")
    e(f"s_cmp_lt_u32 s{S_KB}, 2")
    e("s_cbranch_scc1 K2_D01")
    e(f"s_cmp_eq_u32 s{S_KB}, 2")
    e("s_cbranch_scc1 K2_V2")
    e.label("K2_V3"); tile_body(e,3); e("s_branch K2_NEXT")
    e.label("K2_D01")
    e(f"s_cmp_eq_u32 s{S_KB}, 0")
    e("s_cbranch_scc1 K2_V0")
    e.label("K2_V1"); tile_body(e,1); e("s_branch K2_NEXT")
    for kb in (0,2,4,6,7):
        e.label(f"K2_V{kb}"); tile_body(e,kb); e("s_branch K2_NEXT")
    e.label("K2_FLUSH")
    e(f"v_lshl_add_u32 v{V_HA}, s{S_OB}, 1, v{V_HC}")
    for blk in range(4):
        for s_ in finalize(Nn[blk],Pp[blk],blk,mid=["s_nop 0"]): e(s_)
    e.label("K2_LOOPDONE")
    stamp(5)
    e(f"s_cmp_eq_u64 s[{S_FL}:{S_FL+1}], 0")
    e("s_cbranch_scc1 K2_NOV")
    e(f"v_mov_b32 v5, {L_FLAG}")
    e("v_mov_b32 v6, 1")
    e("ds_write_b32 v5, v6 offset:4")
    e.label("K2_NOV")
    e("s_waitcnt vmcnt(0) lgkmcnt(0)")
    e("s_barrier")
    stamp(6)
    e(f"v_mov_b32 v5, {L_FLAG}")
    e("ds_read_b32 v6, v5 offset:4")
    e("s_waitcnt lgkmcnt(0)")
    e("v_readfirstlane_b32 s46, v6")
    e("s_cmp_eq_u32 s46, 0")
    e("s_cbranch_scc1 K2_EPI")
    e("s_barrier")
    zero_hsum("K2_ZH1")
    e("s_waitcnt lgkmcnt(0)")
    e("s_barrier")
    tile_range()
    lane_consts()
    e(f"s_mov_b32 s{S_MODE}, 0")
    e("s_branch K2_SAFE")
    e.label("K2_SLOW")
    lane_consts()
    e(f"s_mov_b32 s{S_MODE}, 1")
    e("s_mov_b32 s66, 0")
    e("s_barrier")
    e(f"s_cmp_lg_u32 s{S_W}, 0")
    e("s_cbranch_scc1 K2_SR")
    e(f"v_lshlrev_b32 v4, 2, v1")
    e(f"v_add_u32 v4, {L_DEG}, v4")
    e("v_mov_b32 v5, 0")
    e("ds_write_b32 v4, v5")
    e.label("K2_SR")
    e("s_cmp_ge_u32 s66, 500")
    e("s_cbranch_scc1 K2_EPI0")
    e("s_lshr_b32 s67, s66, 1")
    e("s_lshl_b32 s46, s2, 8")
    e("s_add_u32 s46, s46, s67")
    e("s_lshl_b32 s46, s46, 2")
    e(f"s_add_u32 s46, s46, {WS_PACKT}")
    e("v_mov_b32 v4, s46")
    e(f"buffer_load_dword v5, v4, s[{S_WS}:{S_WS+3}], 0 offen")
    e("s_waitcnt vmcnt(0)")
    e("v_readfirstlane_b32 s68, v5")
    e("s_nop 3")
    e("s_lshr_b32 s69, s68, 16")
    e("s_and_b32 s68, s68, 0xffff")
    e("s_and_b32 s46, s66, 1")
    e("s_mul_i32 s46, s46, 1280")
    e("s_add_u32 s66, s66, 1")
    e("s_cmp_le_u32 s69, s46")
    e("s_cbranch_scc1 K2_SR")
    e("s_sub_u32 s69, s69, s46")
    e("s_min_u32 s69, s69, 1280")
    e("s_add_u32 s68, s68, s46")
    e("s_waitcnt lgkmcnt(0)")
    e("s_barrier")
    lds_init(False)
    e("s_mul_i32 s46, s67, 2560")
    e("s_add_u32 s46, s46, s68")
    e("s_lshl_b32 s46, s46, 2")
    e("v_lshlrev_b32 v4, 2, v0")
    e(f"buffer_load_dword v32, v4, s[{S_WS}:{S_WS+3}], s46 offen")
    e(f"buffer_load_dword v33, v4, s[{S_WS}:{S_WS+3}], s46 offen offset:2048")
    e("v_add_u32 v5, 0x1000, v4")
    e(f"buffer_load_dword v34, v5, s[{S_WS}:{S_WS+3}], s46 offen")
    e("v_sub_u32 v28, s69, v0")
    e("s_waitcnt vmcnt(0) lgkmcnt(0)")
    e("s_barrier")
    e("v_mov_b32 v7, 1")
    e(f"s_mov_b32 s46, {L_CNT}")
    for k in range(3):
        e(f"v_and_b32 v{64+k}, 63, v{32+k}")
        e(f"v_lshl_add_u32 v{64+k}, v{64+k}, 2, s46")
    e("s_movk_i32 s47, 512")
    e("s_movk_i32 s48, 1024")
    for k,th in ((0,"0"),(1,"s47"),(2,"s48")):
        e(f"v_cmpx_lt_i32 vcc, {th}, v28")
        e(f"ds_add_rtn_u32 v{96+k}, v{64+k}, v7")
    e("s_mov_b64 exec, -1")
    e("s_waitcnt lgkmcnt(0)")
    e("s_barrier")
    node_scan(False)
    e(f"s_cmp_lg_u32 s{S_W}, 0")
    e("s_cbranch_scc1 K2_DG2")
    e("ds_add_u32 v4, v5 offset:512")
    e.label("K2_DG2")
    e("s_mul_i32 s46, s67, 20480")
    e("v_mov_b32 v30, s46")
    for k in range(3): e(f"ds_read_b32 v{64+k}, v{64+k} offset:256")
    e(f"v_mov_b32 v7, {KONE:#x}")
    e("s_movk_i32 s47, 512")
    e("s_movk_i32 s48, 1024")
    e("s_waitcnt lgkmcnt(0)")
    for k,th in ((0,"0"),(1,"s47"),(2,"s48")):
        e(f"v_cmpx_lt_i32 vcc, {th}, v28")
        put(k, 32+k, 64+k, 96+k, 30)
    e("s_mov_b64 exec, -1")
    lane_consts()
    tile_range()
    e("s_waitcnt lgkmcnt(0)")
    e("s_barrier")
    e.label("K2_SAFE")
    e(f"s_cmp_ge_u32 s{S_T}, s{S_TE}")
    e("s_cbranch_scc1 K2_SAFEDONE")
    e(f"s_lshl_b32 s46, s{S_T}, 9")
    if L_LIST: e(f"s_add_u32 s46, s46, {L_LIST}")
    e(f"v_add_u32 v{V_LI}, s46, v{V_LI}")
    e(f"v_add_u32 v{V_LE}, s46, v{V_LE}")
    e.label("K2_SFL")
    for s_ in rd_idx()+rd_ent(): e(s_)
    e(f"s_lshl_b32 s40, s{S_T}, 5")
    for s_ in desc_ops(None): e(s_)
    e(f"v_add_u32 v{V_LI}, 0x200, v{V_LI}")
    e(f"v_add_u32 v{V_LE}, 0x200, v{V_LE}")
    e("s_waitcnt lgkmcnt(0)")
    for g in dma():
        for s_ in g: e(s_)
    e(egather())
    e(f"v_add_u32 v{V_QE}, s{S_OEN}, v{V_QC}")
    e(f"v_add_u32 v{V_QO}, s{S_OON}, v{V_QC}")
    e("s_waitcnt vmcnt(0)")
    for s_ in rd_A()+mvF()+rd_Q(): e(s_)
    e("s_waitcnt lgkmcnt(0)")
    for blk in range(4):
        for st in range(5): e(mfma(blk,st,D[0]))
        e("s_nop 7"); e("s_nop 7")
        for j in range(8):
            e(f"s_cmp_lt_u32 {j}, s{S_KBN}")
            e(f"s_cselect_b32 s46, s{S_OAN}, s{S_OBN}")
            e(f"v_lshl_add_u32 v{V_HA}, s46, 1, v{V_HC}")
            for u in range(2):
                z=D[0]+2*j+u
                e(f"v_exp_f32 v{T+u}, v{z}")
            e("s_nop 0")
            for u in range(2): e(f"v_add_f32 v{T+u}, 1.0, v{T+u}")
            for u in range(2): e(f"v_rcp_f32 v{T+u}, v{T+u}")
            e("s_nop 0")
            for u in range(2): e(f"v_mul_f32 v{T+u}, v{D[0]+2*j+u}, v{T+u}")
            e(f"v_add_f32 v{TM}, v{T}, v{T+1}")
            e(f"v_cvt_f64_f32 {pr(T)}, v{TM}")
            e(f"ds_add_f64 v{V_HA}, {pr(T)} offset:{256*blk}")
    e(f"s_add_u32 s{S_T}, s{S_T}, 1")
    e(f"s_cmp_lt_u32 s{S_T}, s{S_TE}")
    e("s_cbranch_scc1 K2_SFL")
    e.label("K2_SAFEDONE")
    e(f"s_cmp_eq_u32 s{S_MODE}, 1")
    e("s_cbranch_scc1 K2_SR")
    e.label("K2_EPI0")
    e("s_waitcnt vmcnt(0) lgkmcnt(0)")
    e("s_barrier")
    e.label("K2_EPI")
    e(f"s_cmp_ge_u32 s{S_W}, 4")
    e("s_cbranch_scc1 K2_E1")
    e(f"s_and_b32 s46, s{S_W}, 1")
    e("s_lshl_b32 s47, s46, 13")
    e(f"s_add_u32 s47, s47, {WS_FRAG+36*1024}")
    e("v_lshlrev_b32 v4, 4, v1")
    for s_ in range(8):
        if s_==4: e("s_add_u32 s47, s47, 4096")
        e(f"buffer_load_dwordx4 {q4(W+4*s_)}, v4, s[{S_WS}:{S_WS+3}], s47 offen offset:{1024*(s_&3)}")
    srd(e,56,60,61,128)
    e("s_lshl_b32 s47, s46, 6")
    e("v_and_b32 v2, 31, v1")
    e("v_lshlrev_b32 v5, 1, v2")
    e("buffer_load_ushort v24, v5, s[56:59], s47 offen")
    e.label("K2_E1")
    e(f"s_mov_b32 s46, {f2u(-0.6931471805599453):#x}")
    e("v_lshlrev_b32 v4, 5, v0")
    e(f"v_add_u32 v4, {L_HSUM}, v4")
    for i in range(3):
        e(f"ds_read_b128 {q4(52+8*i)}, v4 offset:{16384*i}")
        e(f"ds_read_b128 {q4(56+8*i)}, v4 offset:{16384*i+16}")
    e("v_lshrrev_b32 v5, 5, v0")
    e("v_and_b32 v6, 31, v0")
    e("v_lshlrev_b32 v6, 3, v6")
    e(f"s_movk_i32 s47, {PL_STRIDE}")
    e("v_mad_u32_u24 v5, v5, s47, v6")
    e("s_waitcnt lgkmcnt(0)")
    for i in range(3):
        for u in range(4): e(f"v_cvt_f32_f64 v{32+4*i+u}, {pr(52+8*i+2*u)}")
    def conv(b, off):
        for u in range(4): e(f"v_mul_f32 v{b+u}, s46, v{b+u}")
        e(f"v_cvt_pk_bf16_f32 v44, v{b}, v{b+1}")
        e(f"v_cvt_pk_bf16_f32 v45, v{b+2}, v{b+3}")
        e(f"ds_write_b64 v5, v[44:45] offset:{L_PHI+off}")
        e("v_lshlrev_b32 v46, 16, v44"); e("v_and_b32 v47, 0xffff0000, v44")
        e("v_lshlrev_b32 v48, 16, v45"); e("v_and_b32 v49, 0xffff0000, v45")
        for u in range(4): e(f"v_sub_f32 v{b+u}, v{b+u}, v{46+u}")
        e(f"v_cvt_pk_bf16_f32 v50, v{b}, v{b+1}")
        e(f"v_cvt_pk_bf16_f32 v51, v{b+2}, v{b+3}")
        e(f"ds_write_b64 v5, v[50:51] offset:{L_PLO+off}")
    conv(32,0)
    conv(36,16*PL_STRIDE)
    e("v_cmp_gt_u32 vcc, 256, v0")
    e("s_and_saveexec_b64 s[48:49], vcc")
    e("s_cbranch_execz K2_E2")
    conv(40,32*PL_STRIDE)
    e.label("K2_E2")
    e("s_mov_b64 exec, s[48:49]")
    e("s_waitcnt lgkmcnt(0)")
    e("s_barrier")
    e(f"s_cmp_ge_u32 s{S_W}, 4")
    e("s_cbranch_scc1 "+("K2_ST" if STAMP else "K2_END"))
    e("v_and_b32 v2, 31, v1")
    e("v_lshrrev_b32 v3, 5, v1")
    e(f"s_lshr_b32 s46, s{S_W}, 1")
    e("s_lshl_b32 s48, s46, 5")
    e("v_add_u32 v4, s48, v2")
    e(f"s_movk_i32 s47, {PL_STRIDE}")
    e("v_mul_u32_u24 v4, s47, v4")
    e("v_lshl_add_u32 v4, v3, 4, v4")
    for s_ in range(8): e(f"ds_read_b128 {q4(32+4*s_)}, v4 offset:{L_PHI+32*s_}")
    for s_ in range(8): e(f"ds_read_b128 {q4(64+4*s_)}, v4 offset:{L_PLO+32*s_}")
    e("v_lshlrev_b32 v5, 4, v3")
    e("s_lshl_b32 s48, s48, 2")
    e(f"s_add_u32 s48, s48, {L_DEG}")
    e("v_add_u32 v5, s48, v5")
    for g in range(4): e(f"ds_read_b128 {q4(96+4*g)}, v5 offset:{32*g}")
    e("s_waitcnt vmcnt(0) lgkmcnt(0)")
    for s_ in range(8):
        c="0" if s_==0 else "v[112:127]"
        e(f"v_mfma_f32_32x32x16_bf16 v[112:127], {q4(32+4*s_)}, {q4(W+4*s_)}, {c}")
    for s_ in range(8):
        e(f"v_mfma_f32_32x32x16_bf16 v[112:127], {q4(64+4*s_)}, {q4(W+4*s_)}, v[112:127]")
    e("v_lshlrev_b32 v24, 16, v24")
    for r in range(16): e(f"v_cvt_f32_u32 v{96+r}, v{96+r}")
    srd(e,S_XR,62,63,N_NODES*128)
    e(f"s_lshl_b32 s48, s46, 5")
    e(f"s_add_u32 s48, s48, s{S_N0}")
    e("s_lshl_b32 s48, s48, 7")
    e(f"s_and_b32 s49, s{S_W}, 1")
    e("s_lshl_b32 s49, s49, 6")
    e("s_add_u32 s48, s48, s49")
    e("v_lshlrev_b32 v6, 1, v2")
    e("v_lshl_add_u32 v6, v3, 9, v6")
    e("s_lshl_b32 s49, s46, 5")
    e(f"s_sub_u32 s49, s{S_NN}, s49")
    e("v_lshlrev_b32 v7, 2, v3")
    e("v_sub_u32 v7, s49, v7")
    e("s_nop 7")
    for r in range(16):
        e(f"v_fma_f32 v{112+r}, v{96+r}, v24, v{112+r}")
    for r in range(16):
        e(f"v_cvt_pk_bf16_f32 v{112+r}, v{112+r}, v{112+r}")
    for r in range(16):
        ro=(r&3)+8*(r>>2)
        e(f"v_cmpx_lt_i32 vcc, {ro}, v7")
        e(f"buffer_store_short v{112+r}, v6, s[{S_XR}:{S_XR+3}], s48 offen offset:{128*ro}")
    if STAMP:
        e.label("K2_ST")
        e("s_mov_b64 exec, -1")
        e("s_waitcnt vmcnt(0)")
        stamp(7)
        e("s_waitcnt lgkmcnt(0)")
        srd(e,56,52,53,0x1000000)
        e("s_lshl_b32 s46, s2, 3")
        e(f"s_add_u32 s46, s46, s{S_W}")
        e("s_lshl_b32 s46, s46, 6")
        e("s_add_u32 s46, s46, 0x300000")
        for i in range(8):
            e(f"v_mov_b32 v4, s{70+2*i}")
            e("v_mov_b32 v5, 0")
            e(f"buffer_store_dword v4, v5, s[56:59], s46 offen offset:{4*i}")
    e.label("K2_END")
    e("s_endpgm")
    return e.text(), NV, 96
```

```python
N_NODES=10000; E=640000
CHUNK=2560; NCHUNK=250; NB=256
WS_CELLS=0
WS_OV=0x400000
WS_FRAG=0x680000
WS_END=0x690000
EMPTY=0xffffffff; VALID_LIM=0xa0000000
MAGIC_B=214749
LOG2E=1.4426950408889634
import struct
def f2u(x): return struct.unpack("<I", struct.pack("<f", x))[0]
class Em:
    def __init__(self): self.L=[]
    def __call__(self, s):
        for line in s.split("\n"):
            line=line.strip()
            if line: self.L.append(line)
    def label(self, s): self.L.append(s+":")
    def text(self):
        out=[]
        for l in self.L:
            out.append(l if l.endswith(":") else "    "+l)
        return "\n".join(out)+"\n"
def vr(a,n=1): return f"v{a}" if n==1 else f"v[{a}:{a+n-1}]"
def sr(a,n=1): return f"s{a}" if n==1 else f"s[{a}:{a+n-1}]"
def srd(e, s, base_lo, base_hi, nrec, stride=0):
    e(f"s_mov_b32 s{s}, s{base_lo}")
    e(f"s_and_b32 s{s+1}, s{base_hi}, 0xffff")
    if stride: e(f"s_or_b32 s{s+1}, s{s+1}, {stride<<16:#x}")
    e(f"s_mov_b32 s{s+2}, {nrec:#x}")
    e(f"s_mov_b32 s{s+3}, 0x20000")
def scan_incl(e, v):
    for ctl in ("row_shr:1 row_mask:0xf bank_mask:0xf bound_ctrl:0","row_shr:2 row_mask:0xf bank_mask:0xf bound_ctrl:0",
                "row_shr:4 row_mask:0xf bank_mask:0xf bound_ctrl:0","row_shr:8 row_mask:0xf bank_mask:0xf bound_ctrl:0",
                "row_bcast:15 row_mask:0xa bank_mask:0xf","row_bcast:31 row_mask:0xc bank_mask:0xf"):
        e("s_nop 1")
        e(f"v_add_u32_dpp v{v}, v{v}, v{v} {ctl}")
def kdesc(name, vgpr, sgpr):
    acc=(vgpr+3)//4*4
    return f""".section .rodata,"a"
.p2align 6
.amdhsa_kernel {name}
  .amdhsa_next_free_vgpr {vgpr}
  .amdhsa_next_free_sgpr {sgpr}
  .amdhsa_accum_offset {acc}
  .amdhsa_group_segment_fixed_size 0
  .amdhsa_kernarg_size 88
  .amdhsa_user_sgpr_count 2
  .amdhsa_user_sgpr_kernarg_segment_ptr 1
  .amdhsa_system_sgpr_workgroup_id_x 1
.end_amdhsa_kernel
.text
"""
```

```python
from common import *
L1_CELL=2048; L1_OV=L1_CELL+16384; K1_LDS=L1_OV+10240
STAMP=False
def gen_k1():
    e=Em()
    e.label("sort_kernel")
    e("s_cmp_ge_u32 s2, 256")
    e("s_cbranch_scc1 K1_END")
    if STAMP: e("s_memrealtime s[36:37]")
    e("s_load_dwordx4 s[4:7], s[0:1], 16")
    e("s_load_dwordx2 s[8:9], s[0:1], 80")
    e("s_load_dwordx2 s[10:11], s[0:1], 32")
    e("s_load_dwordx2 s[20:21], s[0:1], 48")
    e("v_lshlrev_b32 v1, 4, v0")
    e("v_and_b32 v2, 63, v0")
    e("s_mul_i32 s22, s2, 10240")
    e(f"s_mov_b32 s28, {MAGIC_B}")
    e("s_movk_i32 s29, 625")
    e("s_cmp_ge_u32 s2, 250")
    e("s_cbranch_scc1 K1_PREP")
    e("s_waitcnt lgkmcnt(0)")
    srd(e,16,6,7,E*4)
    srd(e,12,4,5,E*4)
    e("buffer_load_dwordx4 v[4:7], v1, s[16:19], s22 offen")
    e("buffer_load_dwordx4 v[8:11], v1, s[12:15], s22 offen")
    srd(e,24,8,9,WS_END)
    e("v_mov_b32 v12, 0")
    e("v_mov_b32 v13, 1")
    e("v_lshlrev_b32 v3, 2, v0")
    e("v_cmp_gt_u32 vcc, 256, v0")
    e("s_and_saveexec_b64 s[30:31], vcc")
    e("s_cbranch_execz K1_Z")
    e("ds_write_b32 v3, v12")
    e.label("K1_Z")
    e("s_mov_b64 exec, s[30:31]")
    for r in (28,29,30,31): e(f"v_mov_b32 v{r}, -1")
    e(f"ds_write_b128 v1, v[28:31] offset:{L1_CELL}")
    e("v_cmp_gt_u32 vcc, 384, v0")
    e("s_and_saveexec_b64 s[30:31], vcc")
    e("s_cbranch_execz K1_Z2")
    e(f"ds_write_b128 v1, v[28:31] offset:{L1_CELL+10240}")
    e.label("K1_Z2")
    e("s_mov_b64 exec, s[30:31]")
    e("v_lshlrev_b32 v14, 22, v0")
    e("s_waitcnt lgkmcnt(0)")
    e("s_barrier")
    e("s_waitcnt vmcnt(1)")
    for j in range(4):
        e(f"v_mul_u32_u24 v{16+j}, s28, v{4+j}")
    for j in range(4):
        e(f"v_lshrrev_b32 v{16+j}, 23, v{16+j}")
    for j in range(4):
        e(f"v_and_b32 v{16+j}, 0xff, v{16+j}")
    for j in range(4):
        e(f"v_mad_u32_u24 v{20+j}, v{16+j}, s29, 15")
    for j in range(4):
        e(f"v_lshlrev_b32 v{16+j}, 2, v{16+j}")
        e(f"ds_add_rtn_u32 v{24+j}, v{16+j}, v13")
    for j in range(4):
        e(f"v_lshrrev_b32 v{20+j}, 4, v{20+j}")
        e(f"v_sub_u32 v{20+j}, v{4+j}, v{20+j}")
        e(f"v_and_b32 v{20+j}, 63, v{20+j}")
    e("s_waitcnt vmcnt(0)")
    for j in range(4):
        e(f"v_and_b32 v{8+j}, 0x3fff, v{8+j}")
        e(f"v_lshl_or_b32 v{20+j}, v{8+j}, 6, v{20+j}")
        e(f"v_or_b32 v{20+j}, v{20+j}, v14")
        if j<3: e("v_add_u32 v14, 0x100000, v14")
    e("s_waitcnt lgkmcnt(0)")
    e("s_barrier")
    e("v_lshlrev_b32 v28, 4, v2")
    e("ds_read_b128 v[32:35], v28")
    e("s_waitcnt lgkmcnt(0)")
    for j in range(4):
        e(f"v_add_u32 v{48+j}, -12, v{32+j}")
    for j in range(4):
        e(f"v_and_b32 v{48+j}, -4, v{48+j}")
    for j in range(4):
        e(f"v_cmp_lt_u32 vcc, 16, v{32+j}")
        e("s_nop 1")
        e(f"v_cndmask_b32 v{48+j}, 0, v{48+j}, vcc")
    e("v_add_u32 v36, v48, v49")
    e("v_add_u32 v37, v50, v51")
    e("v_add_u32 v36, v36, v37")
    e("v_mov_b32 v37, v36")
    scan_incl(e,37)
    e("v_sub_u32 v40, v37, v36")
    e("v_add_u32 v41, v40, v48")
    e("v_add_u32 v42, v41, v49")
    e("v_add_u32 v43, v42, v50")
    e("v_readlane_b32 s34, v37, 63")
    for j in range(4): e(f"v_lshl_or_b32 v{52+j}, v{40+j}, 16, v{32+j}")
    e("ds_write_b128 v28, v[52:55] offset:1024")
    for j in range(4):
        e(f"ds_read_b32 v{44+j}, v{16+j} offset:1024")
    e("v_cmp_gt_u32 vcc, 64, v0")
    e("s_and_saveexec_b64 s[30:31], vcc")
    e("s_cbranch_execz K1_P")
    e("v_lshlrev_b32 v56, 8, v2")
    e("s_mov_b32 s23, 0xf0000000")
    for j in range(4):
        e(f"v_add_u32 v57, -15, v{32+j}")
        e(f"v_lshl_or_b32 v57, v{40+j}, 12, v57")
        e("v_or_b32 v57, s23, v57")
        e(f"v_cmpx_lt_u32 vcc, 16, v{32+j}")
        e(f"ds_write_b32 v56, v57 offset:{L1_CELL+64*j+60}")
        e("s_mov_b64 exec, -1")
    e.label("K1_P")
    e("s_mov_b64 exec, s[30:31]")
    e("s_waitcnt lgkmcnt(0)")
    for j in range(4):
        e(f"v_and_b32 v32, 0xffff, v{44+j}")
        e(f"v_lshrrev_b32 v33, 16, v{44+j}")
        e(f"v_cmp_lt_u32 vcc, 16, v32")
        e(f"v_lshlrev_b32 v34, 4, v{16+j}")
        e(f"v_add_lshl_u32 v33, v33, v{24+j}, 2")
        e(f"v_cndmask_b32 v32, 16, 15, vcc")
        e(f"v_lshl_add_u32 v34, v{24+j}, 2, v34")
        e(f"v_cmp_lt_u32 vcc, v{24+j}, v32")
        e(f"v_add_u32 v33, {L1_OV-L1_CELL-60}, v33")
        e("s_nop 0")
        e(f"v_cndmask_b32 v34, v33, v34, vcc")
        e(f"ds_write_b32 v34, v{20+j} offset:{L1_CELL}")
    e("s_waitcnt lgkmcnt(0)")
    e("s_barrier")
    e(f"ds_read_b128 v[4:7], v1 offset:{L1_CELL}")
    e("v_lshrrev_b32 v12, 2, v0")
    e("v_and_b32 v13, 3, v0")
    e("v_lshlrev_b32 v13, 4, v13")
    e("v_lshl_add_u32 v12, v12, 14, v13")
    e("s_lshl_b32 s22, s2, 6")
    e("v_cmp_gt_u32 vcc, 384, v0")
    e("s_and_saveexec_b64 s[30:31], vcc")
    e("s_cbranch_execz K1_C2")
    e(f"ds_read_b128 v[8:11], v1 offset:{L1_CELL+10240}")
    e(f"v_add_u32 v14, {160*16384}, v12")
    e("s_waitcnt lgkmcnt(0)")
    e("buffer_store_dwordx4 v[8:11], v14, s[24:27], s22 offen")
    e.label("K1_C2")
    e("s_mov_b64 exec, s[30:31]")
    e("s_waitcnt lgkmcnt(0)")
    e("buffer_store_dwordx4 v[4:7], v12, s[24:27], s22 offen")
    e("s_lshl_b32 s34, s34, 2")
    e("v_cmp_gt_u32 vcc, s34, v1")
    e("s_and_saveexec_b64 s[30:31], vcc")
    e("s_cbranch_execz K1_C3")
    e(f"ds_read_b128 v[8:11], v1 offset:{L1_OV}")
    e("s_mul_i32 s22, s2, 10240")
    e(f"s_add_u32 s22, s22, {WS_OV}")
    e("s_waitcnt lgkmcnt(0)")
    e("buffer_store_dwordx4 v[8:11], v1, s[24:27], s22 offen")
    e.label("K1_C3")
    e("s_mov_b64 exec, s[30:31]")
    if STAMP:
        e("s_waitcnt vmcnt(0)")
        e("s_memrealtime s[38:39]")
        e("s_waitcnt lgkmcnt(0)")
        srd(e,24,8,9,0x1000000)
        e("s_lshl_b32 s23, s2, 3")
        e("s_add_u32 s23, s23, 0x880000")
        e("v_mov_b32 v4, s36"); e("v_mov_b32 v5, s38"); e("v_mov_b32 v6, 0")
        e("buffer_store_dwordx2 v[4:5], v6, s[24:27], s23 offen")
    e("s_endpgm")
    e.label("K1_PREP")
    e("v_lshrrev_b32 v3, 6, v0")
    e("v_and_b32 v4, 31, v2")
    e("v_lshrrev_b32 v5, 5, v2")
    e("v_readfirstlane_b32 s23, v3")
    e("s_sub_u32 s22, s2, 250")
    e("s_mul_i32 s22, s22, 10")
    e("s_add_u32 s22, s22, s23")
    e("s_cmp_ge_u32 s22, 52")
    e("s_cbranch_scc1 K1_END")
    e("s_waitcnt lgkmcnt(0)")
    srd(e,12,10,11,132*128*2)
    srd(e,16,20,21,128*64*2)
    srd(e,24,8,9,WS_END)
    e(f"s_mov_b32 s30, {f2u(-LOG2E):#x}")
    e("v_lshlrev_b32 v6, 4, v2")
    e("s_lshl_b32 s31, s22, 10")
    e(f"s_add_u32 s31, s31, {WS_FRAG}")
    e("v_lshlrev_b32 v7, 1, v4")
    e("s_cmp_ge_u32 s22, 36")
    e("s_cbranch_scc1 K1_W2")
    e("s_cmp_ge_u32 s22, 20")
    e("s_cbranch_scc1 K1_W1D")
    e("s_cmp_ge_u32 s22, 16")
    e("s_cbranch_scc1 K1_WE")
    def load_w1(rowbase_bytes):
        e("v_lshl_add_u32 v8, v5, 13, v7")
        e("s_and_b32 s33, s32, 3")
        e("s_lshl_b32 s33, s33, 11")
        e("s_lshr_b32 s34, s32, 2")
        e("s_lshl_b32 s34, s34, 6")
        e("s_add_u32 s33, s33, s34")
        if rowbase_bytes: e(f"s_add_u32 s33, s33, {rowbase_bytes}")
        for j in range(8):
            e(f"buffer_load_ushort v{10+j}, v8, s[12:15], s33 offen offset:{256*j}")
    e("s_mov_b32 s32, s22")
    load_w1(0)
    e("s_waitcnt vmcnt(0)")
    for j in range(8):
        e(f"v_lshlrev_b32 v{10+j}, 16, v{10+j}")
        e(f"v_mul_f32 v{10+j}, s30, v{10+j}")
    for j in range(4):
        e(f"v_cvt_pk_bf16_f32 v{20+j}, v{10+2*j}, v{11+2*j}")
    e("s_branch K1_ST")
    e.label("K1_W1D")
    e("s_sub_u32 s32, s22, 20")
    load_w1(64*256)
    e("s_waitcnt vmcnt(0)")
    for j in range(4):
        e(f"v_lshl_or_b32 v{20+j}, v{11+2*j}, 16, v{10+2*j}")
    e("s_branch K1_ST")
    e.label("K1_WE")
    e("s_sub_u32 s32, s22, 16")
    e("s_lshl_b32 s33, s32, 6")
    e(f"s_add_u32 s33, s33, {128*256}")
    for j in range(4):
        e(f"buffer_load_ushort v{10+j}, v7, s[12:15], s33 offen offset:{256*j}")
    e("s_waitcnt vmcnt(0)")
    for j in range(4):
        e(f"v_lshlrev_b32 v{10+j}, 16, v{10+j}")
        e(f"v_mul_f32 v{10+j}, s30, v{10+j}")
    for j in range(2):
        e(f"v_cvt_pk_bf16_f32 v{20+j}, v{10+2*j}, v{11+2*j}")
    for j in range(2):
        e(f"v_lshlrev_b32 v14, 16, v{20+j}")
        e(f"v_and_b32 v15, 0xffff0000, v{20+j}")
        e(f"v_sub_f32 v14, v{10+2*j}, v14")
        e(f"v_sub_f32 v15, v{11+2*j}, v15")
        e(f"v_cvt_pk_bf16_f32 v{16+j}, v14, v15")
    e("v_cmp_eq_u32 vcc, 1, v5")
    e("s_nop 1")
    e("v_cndmask_b32 v20, v20, v16, vcc")
    e("v_cndmask_b32 v21, v21, v17, vcc")
    e("v_mov_b32 v22, 0")
    e("v_mov_b32 v23, 0")
    e("s_branch K1_ST")
    e.label("K1_W2")
    e("s_sub_u32 s32, s22, 36")
    e("s_and_b32 s33, s32, 7")
    e("s_lshl_b32 s33, s33, 11")
    e("s_lshr_b32 s34, s32, 3")
    e("s_lshl_b32 s34, s34, 6")
    e("s_add_u32 s33, s33, s34")
    e("v_lshl_add_u32 v8, v5, 10, v7")
    for j in range(8):
        e(f"buffer_load_ushort v{10+j}, v8, s[16:19], s33 offen offset:{128*j}")
    e("s_waitcnt vmcnt(0)")
    for j in range(4):
        e(f"v_lshl_or_b32 v{20+j}, v{11+2*j}, 16, v{10+2*j}")
    e.label("K1_ST")
    e("buffer_store_dwordx4 v[20:23], v6, s[24:27], s31 offen")
    e.label("K1_END")
    e("s_endpgm")
    return e.text(), 64, 48
```

```python
from common import *
L_LIST=0; CAPF=2912; LIST_N=3008
L_QPK=48128
L_GBUF=68608
L_HSUM=101376
L_WM=142336
L_XR=L_GBUF
L_CNT=162816; L_BASE16=L_CNT+256; L_DEG=L_CNT+512; L_FLAG=L_CNT+768; L_PROG=L_CNT+800
K2_LDS=L_CNT+832
PL_STRIDE=272; L_PHI=0; L_PLO=64*PL_STRIDE
D=[32,48]; EE=64
Nn=[80,82,84,86]; Pp=[88,90,92,94]
AX=96; F=112; FN=116
PT=120; R=122; T=124; TM=126; TM2=127
W=128; W5=192
IX=208
AR=216
V_LI0=220; V_LE0=221; V_QC=222; V_HC=223
V_LI=224; V_LE=225; V_QE=226; V_QO=227
V_ONE=228
V_PP=230
V_PM=231
V_PR=232
V_HA=233; V_BASE=234
NV=236
S_XS=4; S_EA=8; S_WS=12; S_XR=16
S_W=20; S_N0=21; S_NN=22; S_T=23; S_TE=24
S_KB=25; S_OA=26; S_OB=27; S_KBN=28; S_OAN=29; S_OBN=30; S_OEN=31; S_OON=32
S_FL=34; S_GB=36; S_THR=37; S_MODE=38; S_M4=39; S_CNT=33
NULL_SRC=0x3fff; NULL_EOFF=0x7ffffff0; KONE=0x3f803f80
ABL=set()
STAMP=False
def pr(x): return f"v[{x}:{x+1}]"
def q4(x): return f"v[{x}:{x+3}]"

def desc_ops():
    return [
     "s_add_u32 s41, s40, 31",
     f"v_cmp_ge_u32 vcc, s41, v{V_BASE}",
     "s_bcnt1_i32_b64 s42, vcc",
     "s_sub_u32 s42, s42, 1",
     "s_max_i32 s42, s42, 0",
     f"v_readlane_b32 s43, v{V_BASE}, s42",
     "s_sub_u32 s49, s42, 1",
     "s_max_i32 s49, s49, 0",
     f"s_lshl_b32 s{S_OBN}, s42, 9",
     "s_sub_i32 s44, s43, s40",
     "s_lshr_b32 s45, s44, 2",
     "s_sub_i32 s46, 0, s44",
     "s_and_b32 s47, s46, 0x60",
     "s_cselect_b32 s47, 8, 0",
     "s_cmp_lt_u32 s46, 128",
     "s_cselect_b32 s47, 8, s47",
     "s_cmp_ge_i32 s44, 0",
     f"s_cselect_b32 s{S_KBN}, s45, s47",
     "s_cselect_b32 s49, s49, s42",
     f"s_lshl_b32 s{S_OAN}, s49, 9",
     "s_bitcmp1_b32 s49, 0",
     f"s_cselect_b32 s{S_OEN}, s{S_OBN}, s{S_OAN}",
     f"s_cselect_b32 s{S_OON}, s{S_OAN}, s{S_OBN}",
    ]
def mfma(blk, step, d):
    a = q4(AX+4*step) if step<4 else q4(F)
    b = q4(W+16*blk+4*step) if step<4 else q4(W5+4*blk)
    c = "0" if step==0 else f"v[{d}:{d+15}]"
    return f"v_mfma_f32_32x32x16_bf16 v[{d}:{d+15}], {a}, {b}, {c}"
def rd_A():
    return [f"ds_read_b128 {q4(AX+4*s)}, v{AR+s}" for s in range(4)]
def rd_Q():
    L=[]
    for blk in range(4):
        L.append(f"ds_read_b32 v{W5+4*blk+2}, v{V_QE} offset:{128*blk}")
        L.append(f"ds_read_b32 v{W5+4*blk+3}, v{V_QO} offset:{128*blk}")
    return L
def rd_idx():
    return [f"ds_read_b32 v{IX+2*q}, v{V_LI} offset:{128*q}" for q in range(4)]
def rd_ent(): return [f"ds_read_b128 {q4(FN)}, v{V_LE}"]
def dma():
    L=[]
    for q in range(4):
        L.append([f"s_add_u32 m0, s{S_GB}, {1024*q}", "s_nop 0", f"buffer_load_dwordx4 {pr(IX+2*q)}, s[{S_XS}:{S_XS+3}], 0 idxen offen lds"])
    return L
def egather(): return f"buffer_load_dwordx2 {pr(FN)}, v{FN+1}, s[{S_EA}:{S_EA+3}], 0 offen"
def mvF(): return [f"v_pk_mov_b32 {pr(F)}, {pr(FN)}, {pr(FN)} op_sel:[0,1]", f"v_pk_mov_b32 {pr(F+2)}, {pr(FN+2)}, {pr(FN+2)} op_sel:[0,1]"]
def finalize(n, p, blk, mid=None):
    L=[f"v_rcp_f32 v{R}, v{p}", f"v_rcp_f32 v{R+1}, v{p+1}",
       f"v_max_f32 v{TM}, v{p}, v{p+1}",
       f"v_cmp_lt_f32 vcc, s{S_THR}, v{TM}"]
    if mid: L+=mid
    L+=[f"v_pk_mul_f32 {pr(T)}, {pr(n)}, {pr(R)}",
        f"s_or_b64 s[{S_FL}:{S_FL+1}], s[{S_FL}:{S_FL+1}], vcc",
        f"v_add_f32 v{TM2}, v{T}, v{T+1}",
        f"v_cvt_f64_f32 {pr(T)}, v{TM2}",
        f"ds_add_f64 v{V_HA}, {pr(T)} offset:{256*blk}"]
    return L
def pk_run(blk, kb):
    z=D[blk&1]; n=Nn[blk]; ph=Pp[blk]
    L=[]; pc=ph; nz=None
    for j in range(8):
        e=EE+2*j; zj=z+2*j
        last=(j==7)
        if j==kb:
            dst = ph if last else (PT if pc==ph else ph)
            if last and pc==ph:
                L+=finalize(n,pc,blk)
                L.append(f"v_pk_add_f32 {pr(ph)}, {pr(e)}, {pr(V_ONE)}")
            else:
                L+=finalize(n,pc,blk,mid=[f"v_pk_add_f32 {pr(dst)}, {pr(e)}, {pr(V_ONE)}"])
            pc=dst
            if last: L.append(f"v_pk_mov_b32 {pr(n)}, {pr(zj)}, {pr(zj)} op_sel:[0,1]")
            else: nz=zj
        else:
            src = nz if nz is not None else n
            nz=None
            dst = ph if last else (PT if pc==ph else ph)
            if dst==pc:
                L.append(f"v_pk_fma_f32 {pr(n)}, {pr(src)}, {pr(e)}, {pr(src)}")
                L.append(f"v_pk_fma_f32 {pr(n)}, {pr(zj)}, {pr(pc)}, {pr(n)}")
                L.append(f"v_pk_fma_f32 {pr(pc)}, {pr(pc)}, {pr(e)}, {pr(pc)}")
            else:
                L.append(f"v_pk_fma_f32 {pr(n)}, {pr(src)}, {pr(e)}, {pr(src)}")
                L.append(f"v_pk_fma_f32 {pr(dst)}, {pr(pc)}, {pr(e)}, {pr(pc)}")
                L.append(f"v_pk_fma_f32 {pr(n)}, {pr(zj)}, {pr(pc)}, {pr(n)}")
            pc=dst
    assert pc==ph
    return L
def t_run(blk, side):
    z=D[blk&1]; nb=(blk+1)&3; d=D[(blk+1)&1]
    L=[]; side=list(side)
    for i in range(16):
        if i%3==0 and i<=12: L.append(mfma(nb,i//3,d))
        L.append(f"v_exp_f32 v{EE+i}, v{z+i}")
        if side:
            g=side.pop(0)
            L+= g if isinstance(g,list) else [g]
    for g in side: L+= g if isinstance(g,list) else [g]
    return L
def tile_body(e, kb, uid):
    side=[f"s_lshl_b32 s40, s{S_T}, 5", "s_add_u32 s40, s40, 32"]+desc_ops()
    if kb<8: e(f"v_lshl_add_u32 v{V_HA}, s{S_OA}, 1, v{V_HC}")
    for s in t_run(0, side[:16]): e(s)
    for s in pk_run(0,kb): e(s)
    for s in t_run(1, side[16:]): e(s)
    e(f"v_add_u32 v{V_QE}, s{S_OEN}, v{V_QC}")
    e(f"v_add_u32 v{V_QO}, s{S_OON}, v{V_QC}")
    for s in pk_run(1,kb): e(s)
    for s in t_run(2, []): e(s)
    e("s_waitcnt vmcnt(0)")
    for s in rd_A(): e(s)
    for s in mvF(): e(s)
    for s in rd_Q(): e(s)
    for s in rd_idx(): e(s)
    for s in rd_ent(): e(s)
    if 'noprio' not in ABL: e(f"ds_read_b32 v{V_PR}, v{V_PP}")
    e(f"v_add_u32 v{V_LI}, 0x200, v{V_LI}")
    e(f"v_add_u32 v{V_LE}, 0x200, v{V_LE}")
    for s in pk_run(2,kb): e(s)
    e("s_waitcnt lgkmcnt(0)")
    dm=dma()
    if 'nodma' in ABL: dm=[[],[],[],[]]
    eg=[] if 'noeg' in ABL else egather()
    pri=[]
    if 'noprio' not in ABL:
        pri=[[f"v_readfirstlane_b32 s50, v{V_PR}"],
             [f"s_add_u32 s{S_CNT}, s{S_CNT}, 1", f"v_mov_b32 v{V_PR}, s{S_CNT}"],
             [f"ds_write_b32 v{V_PM}, v{V_PR}", f"s_cmp_gt_u32 s{S_CNT}, s50", f"s_cbranch_scc1 K2_PL{uid}", "s_setprio 1", f"s_branch K2_PD{uid}", f"K2_PL{uid}:", "s_setprio 0", f"K2_PD{uid}:"]]
    for s in t_run(3, [[],dm[0],[],dm[1],[],dm[2],[],dm[3],[],eg]+pri): e(s)
    for s in pk_run(3,kb): e(s)

def gen_k2():
    e=Em()
    def stamp(i):
        if STAMP and 'pst' not in ABL: e(f"s_memtime s[{70+2*i}:{71+2*i}]")
        if STAMP and 'pst' in ABL and i in (0,7): e(f"s_memtime s[{70+2*i}:{71+2*i}]")
    def pstamp(i):
        if STAMP and 'pst' in ABL: e(f"s_memtime s[{70+2*i}:{71+2*i}]")
    e.label("main_kernel")
    e("s_cmp_ge_u32 s2, 256")
    e("s_cbranch_scc1 K2_END")
    stamp(0)
    if STAMP: e("s_memrealtime s[86:87]")
    e("s_load_dwordx2 s[52:53], s[0:1], 80")
    e("s_load_dwordx4 s[40:43], s[0:1], 0")
    e("s_load_dwordx2 s[44:45], s[0:1], 40")
    e("s_load_dwordx4 s[60:63], s[0:1], 56")
    e("v_and_b32 v1, 63, v0")
    e("v_lshrrev_b32 v2, 6, v0")
    def zero_hsum():
        e("v_lshlrev_b32 v26, 4, v0")
        e(f"v_add_u32 v26, {L_HSUM}, v26")
        for r in (112,113,114,115): e(f"v_mov_b32 v{r}, 0")
        for i in range(5): e(f"ds_write_b128 v26, v[112:115] offset:{8192*i}")
    zero_hsum()
    e(f"v_readfirstlane_b32 s{S_W}, v2")
    e("v_cmp_gt_u32 vcc, 208, v0")
    e("s_and_saveexec_b64 s[46:47], vcc")
    e("s_cbranch_execz K2_I0")
    e("v_lshlrev_b32 v27, 2, v0")
    e(f"v_add_u32 v27, {L_CNT}, v27")
    e("ds_write_b32 v27, v112")
    e.label("K2_I0")
    e("s_mov_b64 exec, s[46:47]")
    e("s_mul_i32 s46, s2, 625")
    e("s_add_u32 s47, s46, 15")
    e(f"s_lshr_b32 s{S_N0}, s47, 4")
    e("s_add_u32 s47, s46, 640")
    e("s_lshr_b32 s47, s47, 4")
    e(f"s_sub_u32 s{S_NN}, s47, s{S_N0}")
    e("v_and_b32 v2, 31, v1")
    e("v_lshrrev_b32 v3, 5, v1")
    e("v_lshlrev_b32 v4, 4, v0")
    for r in (40,41,42,43): e(f"v_mov_b32 v{r}, -1")
    e("s_lshl_b32 s46, s2, 14")
    e("v_lshlrev_b32 v24, 1, v2")
    e("v_lshlrev_b32 v25, 4, v1")
    e(f"s_cmp_ge_u32 s{S_W}, 5")
    e(f"s_cselect_b32 s50, 3, 0")
    e(f"s_sub_u32 s50, s{S_W}, s50")
    e("v_and_b32 v8, 7, v1")
    e("v_lshrrev_b32 v9, 4, v1")
    e("v_xor_b32 v8, v8, v9")
    e(f"v_lshlrev_b32 v{IX+1}, 4, v8")
    e(f"v_xor_b32 v{IX+3}, 64, v{IX+1}")
    e("s_and_b32 s47, s50, 1")
    e("s_lshl_b32 s47, s47, 6")
    e(f"v_xor_b32 v8, s47, v{IX+1}")
    e("v_lshrrev_b32 v9, 3, v1")
    e("v_lshl_add_u32 v8, v9, 7, v8")
    e("s_waitcnt lgkmcnt(0)")
    if 'p1' in ABL: pstamp(1)
    srd(e,S_WS,52,53,WS_END)
    e(f"buffer_load_dwordx4 v[32:35], v4, s[{S_WS}:{S_WS+3}], s46 offen")
    e("s_add_u32 s46, s46, 8192")
    e("v_cmp_gt_u32 vcc, 488, v0")
    e("s_and_saveexec_b64 s[48:49], vcc")
    e(f"buffer_load_dwordx4 v[40:43], v4, s[{S_WS}:{S_WS+3}], s46 offen")
    e("s_mov_b64 exec, s[48:49]")
    e("s_barrier")
    srd(e,S_XR,40,41,N_NODES*128)
    e("s_lshl_b32 s47, s50, 10")
    e(f"s_add_u32 m0, s47, {L_XR}")
    e(f"s_lshl_b32 s48, s{S_N0}, 7")
    e("s_add_u32 s47, s47, s48")
    e(f"buffer_load_dwordx4 v8, s[{S_XR}:{S_XR+3}], s47 offen lds")
    e(f"s_cmp_ge_u32 s{S_W}, 4")
    e("s_cbranch_scc1 K2_NQ0")
    e(f"s_lshl_b32 s48, s{S_W}, 12")
    e(f"s_add_u32 s48, s48, {WS_FRAG+20*1024}")
    for s_ in range(4): e(f"buffer_load_dwordx4 {q4(64+4*s_)}, v25, s[{S_WS}:{S_WS+3}], s48 offen offset:{1024*s_}")
    srd(e,56,44,45,256)
    e(f"s_lshl_b32 s47, s{S_W}, 6")
    e("buffer_load_ushort v24, v24, s[56:59], s47 offen")
    e.label("K2_NQ0")
    srd(e,S_XS,40,41,N_NODES,stride=128)
    srd(e,S_EA,42,43,E*8)
    e("v_lshrrev_b32 v26, 2, v0")
    e("v_and_b32 v27, 3, v0")
    e("v_lshlrev_b32 v27, 2, v27")
    e("s_movk_i32 s46, 2560")
    e("v_mul_u32_u24 v30, s46, v26")
    e("v_add_lshl_u32 v30, v30, v27, 2")
    e(f"v_add_u32 v30, {WS_OV}, v30")
    e(f"v_add_u32 v31, {128*10240}, v30")
    if 'p1' in ABL: pstamp(2)
    if 'p1' in ABL: pstamp(4)
    e(f"s_lshl_b32 s{S_GB}, s{S_W}, 12")
    e(f"s_add_u32 s{S_GB}, s{S_GB}, {L_GBUF}")
    e("v_bfe_u32 v4, v2, 1, 3")
    e("v_lshlrev_b32 v5, 2, v3")
    e("v_xor_b32 v4, v4, v5")
    e("v_lshlrev_b32 v4, 4, v4")
    e("v_lshl_add_u32 v20, v2, 7, v4")
    e(f"v_add_u32 v{AR}, s{S_GB}, v20")
    for s_ in range(1,4): e(f"v_xor_b32 v{AR+s_}, {16*s_}, v{AR}")
    e(f"v_mov_b32 v{IX+5}, v{IX+1}")
    e(f"v_mov_b32 v{IX+7}, v{IX+3}")
    e("v_lshrrev_b32 v4, 3, v1")
    e("v_and_b32 v5, 3, v4")
    e("v_lshrrev_b32 v4, 2, v4")
    e("v_lshl_add_u32 v4, v5, 1, v4")
    e(f"v_lshlrev_b32 v{V_LI0}, 4, v4")
    e("v_and_b32 v4, 24, v2")
    e("v_and_b32 v5, 3, v2")
    e("v_lshl_add_u32 v4, v5, 1, v4")
    e("v_bfe_u32 v5, v2, 2, 1")
    e(f"v_add_lshl_u32 v{V_LE0}, v4, v5, 4")
    e("v_lshlrev_b32 v4, 2, v2")
    e(f"v_add_u32 v{V_QC}, {L_QPK}, v4")
    e("v_lshlrev_b32 v4, 3, v2")
    e(f"v_add_u32 v{V_HC}, {L_HSUM}, v4")
    e(f"v_mov_b32 v{V_ONE}, 1.0")
    e(f"v_mov_b32 v{V_ONE+1}, 1.0")
    e(f"s_mov_b32 s{S_THR}, {f2u(2.0**80):#x}")
    e(f"s_lshl_b32 s46, s{S_W}, 2")
    e(f"s_add_u32 s47, s46, {L_PROG}")
    e(f"v_mov_b32 v{V_PM}, s47")
    e("s_xor_b32 s46, s46, 16")
    e(f"s_add_u32 s47, s46, {L_PROG}")
    e(f"v_mov_b32 v{V_PP}, s47")
    e(f"s_cmp_ge_u32 s{S_W}, 4")
    e("s_cbranch_scc1 K2_NQ1")
    e("s_waitcnt vmcnt(6)")
    e("s_branch K2_NQ2")
    e.label("K2_NQ1")
    e("s_waitcnt vmcnt(1)")
    e.label("K2_NQ2")
    if 'p1' in ABL: pstamp(3)
    e("v_mov_b32_dpp v5, v35 quad_perm:[3,3,3,3] row_mask:0xf bank_mask:0xf")
    e("v_mov_b32_dpp v6, v43 quad_perm:[3,3,3,3] row_mask:0xf bank_mask:0xf")
    e("s_mov_b32 s46, 0xf0000000")
    e("v_add_u32 v7, 1, v5")
    e("v_add_u32 v8, 1, v6")
    e("v_cmp_lt_u32 vcc, s46, v7")
    e("v_cmp_lt_u32 s[46:47], s46, v8")
    e("v_and_b32 v28, 0xfff, v5")
    e("v_and_b32 v29, 0xfff, v6")
    e("v_bfe_u32 v5, v5, 12, 12")
    e("v_bfe_u32 v6, v6, 12, 12")
    e("v_cndmask_b32 v28, 0, v28, vcc")
    e("v_cndmask_b32 v29, 0, v29, s[46:47]")
    e("v_lshl_add_u32 v30, v5, 2, v30")
    e("v_lshl_add_u32 v31, v6, 2, v31")
    e("v_max_u32 v5, v28, v29")
    e("v_sub_u32 v28, v28, v27")
    e("v_sub_u32 v29, v29, v27")
    e("v_cmp_lt_u32 s[64:65], 16, v5")
    e("v_cmpx_lt_i32 vcc, 0, v28")
    e("s_cbranch_execz K2_NA1")
    e(f"buffer_load_dwordx4 v[36:39], v30, s[{S_WS}:{S_WS+3}], 0 offen")
    e.label("K2_NA1")
    e("s_mov_b64 exec, -1")
    e("v_cmpx_lt_i32 vcc, 0, v29")
    e("s_cbranch_execz K2_NB1")
    e(f"buffer_load_dwordx4 v[44:47], v31, s[{S_WS}:{S_WS+3}], 0 offen")
    e.label("K2_NB1")
    e("s_mov_b64 exec, -1")
    e("s_cmp_eq_u64 s[64:65], 0")
    e("s_cbranch_scc1 K2_NF")
    e(f"v_mov_b32 v5, {L_FLAG}")
    e("v_mov_b32 v6, 1")
    e("ds_write_b32 v5, v6")
    e.label("K2_NF")
    e("s_movk_i32 s46, 0x5000")
    e("v_lshrrev_b32 v26, 2, v0")
    e("v_mul_u32_u24 v26, s46, v26")
    e("v_add_u32 v27, 0x280000, v26")
    e("v_mov_b32 v7, 1")
    e(f"s_mov_b32 s46, {L_CNT}")
    e(f"v_mov_b32 v6, {KONE:#x}")
    e(f"s_mov_b32 s51, {VALID_LIM:#x}")
    if 'p1' in ABL: pstamp(5)
    stamp(1)
    groups=[(0,None,0),(4,28,0),(8,None,0),(12,29,0)]
    AD=80
    def cmpx(gi,j):
        k0,rem,off=groups[gi]
        return f"v_cmpx_gt_u32 vcc, s51, v{32+k0+j}" if rem is None else f"v_cmpx_lt_i32 vcc, {j}, v{rem}"
    def addr_ops(k): return [f"v_and_b32 v{AD+k}, 63, v{32+k}", f"v_lshl_add_u32 v{AD+k}, v{AD+k}, 2, s46"]
    for gi in (0,2,1,3):
        k0,rem,off=groups[gi]
        if gi==1:
            e("s_waitcnt vmcnt(0)")
            if 'p1' in ABL: pstamp(6)
        if gi in (1,3):
            e(cmpx(gi,0))
            e(f"s_cbranch_execz K2_R{gi}")
        for j in range(4):
            for s_ in addr_ops(k0+j): e(s_)
        for j in range(4):
            if not (gi in (1,3) and j==0): e(cmpx(gi,j))
            e(f"ds_add_rtn_u32 v{96+k0+j}, v{AD+k0+j}, v7")
        e.label(f"K2_R{gi}")
        e("s_mov_b64 exec, -1")
        if gi==2:
            DENSE_PAYLOAD=True
            PAY={0:48,1:52,2:56,3:60,8:112,9:116,10:120,11:124}
            def payload(dst, ent, cb):
                e(f"v_bfe_i32 v4, v{ent}, 0, 1")
                e(f"v_bfe_u32 v{dst}, v{ent}, 6, 14")
                e(f"v_lshrrev_b32 v{dst+1}, 20, v{ent}")
                e(f"v_and_b32 v{dst+3}, v6, v4")
                e(f"v_lshl_add_u32 v{dst+1}, v{dst+1}, 3, v{cb}")
                e(f"v_xor_b32 v{dst+2}, v6, v{dst+3}")
            for k in (0,1,2,3): payload(PAY[k],32+k,26)
            for k in (8,9,10,11): payload(PAY[k],32+k,27)
    for i in range(3):
        if i<2: e(f"s_add_u32 s47, s{S_W}, {8*i}")
        else:
            e(f"s_and_b32 s47, s{S_W}, 3"); e("s_add_u32 s47, s47, 16")
        e("s_lshl_b32 s48, s47, 10")
        e(f"s_add_u32 m0, s48, {L_WM}")
        e(f"s_add_u32 s48, s48, {WS_FRAG}")
        e(f"buffer_load_dwordx4 v25, s[{S_WS}:{S_WS+3}], s48 offen lds")
    if 'p2' in ABL: pstamp(1)
    e("s_waitcnt lgkmcnt(0)")
    if 'p2' in ABL: pstamp(2)
    e("s_barrier")
    stamp(2)
    if 'p2' in ABL: pstamp(3)
    e(f"s_cmp_ge_u32 s{S_W}, 4")
    e("s_cbranch_scc1 K2_NQ3")
    e(f"v_add_u32 v20, {L_XR}, v20")
    e("v_xor_b32 v21, 16, v20"); e("v_xor_b32 v22, 32, v20"); e("v_xor_b32 v23, 48, v20")
    for s_,r in enumerate((20,21,22,23)):
        e(f"ds_read_b128 {q4(128+4*s_)}, v{r}")
        e(f"ds_read_b128 {q4(144+4*s_)}, v{r} offset:4096")
    e.label("K2_NQ3")
    def node_scan(first, uid):
        e(f"v_lshlrev_b32 v4, 2, v1")
        e(f"v_add_u32 v4, {L_CNT}, v4")
        e("ds_read_b32 v5, v4")
        if first: e("ds_read_b32 v7, v4 offset:768")
        e(f"v_cmp_gt_u32 vcc, s{S_NN}, v1")
        e("s_waitcnt lgkmcnt(0)")
        if first: e("v_readfirstlane_b32 s50, v7")
        e("v_add_u32 v8, 3, v5")
        e("v_and_b32 v8, -4, v8")
        e("v_max_u32 v8, 32, v8")
        e("v_cndmask_b32 v8, 0, v8, vcc")
        e("v_mov_b32 v21, v8")
        scan_incl(e,21)
        e("v_sub_u32 v22, v21, v8")
        e("v_lshlrev_b32 v9, 4, v22")
        if L_LIST: e(f"v_add_u32 v9, {L_LIST}, v9")
        e("ds_write_b32 v4, v9 offset:256")
        e(f"v_readlane_b32 s{S_M4}, v21, 63")
        e(f"v_mov_b32 v{V_BASE}, 0x7fffffff")
        e(f"v_cndmask_b32 v{V_BASE}, v{V_BASE}, v22, vcc")
    def pads(uid):
        e(f"v_mov_b32 v12, {NULL_SRC:#x}")
        e(f"v_mov_b32 v13, {NULL_EOFF:#x}")
        e("v_mov_b32 v14, 0")
        e("v_mov_b32 v15, 0")
        e(f"s_cmp_ge_u32 s{S_W}, 2")
        e(f"s_cbranch_scc1 K2_PT{uid}")
        e(f"s_lshl_b32 s46, s{S_W}, 6")
        e(f"s_add_u32 s46, s46, s{S_M4}")
        e("v_add_lshl_u32 v10, s46, v1, 4")
        if L_LIST: e(f"v_add_u32 v10, {L_LIST}, v10")
        e(f"s_cmp_eq_u32 s{S_W}, 1")
        e("s_cselect_b32 exec_hi, 0, -1")
        e("ds_write_b128 v10, v[12:15]")
        e("s_mov_b64 exec, -1")
        e.label(f"K2_PT{uid}")
        e("v_and_b32 v10, 7, v1")
        e(f"v_cmp_eq_u32 vcc, s{S_W}, v10")
        e("v_sub_u32 v11, v8, v5")
        e("v_lshl_add_u32 v10, v5, 4, v9")
        e("v_cndmask_b32 v11, 0, v11, vcc")
        e.label(f"K2_PL{uid}")
        e("v_cmpx_lt_i32 vcc, 0, v11")
        e(f"s_cbranch_execz K2_PE{uid}")
        e("ds_write_b128 v10, v[12:15]")
        e("v_add_u32 v10, 16, v10")
        e("v_add_u32 v11, -1, v11")
        e(f"s_branch K2_PL{uid}")
        e.label(f"K2_PE{uid}")
        e("s_mov_b64 exec, -1")
    node_scan(True,"a")
    if 'p3' in ABL: pstamp(2)
    for k in (0,1,2,3,8,9,10,11,4,5,6,7,12,13,14,15): e(f"ds_read_b32 v{AD+k}, v{AD+k} offset:256")
    e(f"s_cmp_lg_u32 s{S_W}, 0")
    e("s_cbranch_scc1 K2_DG")
    e("ds_write_b32 v4, v5 offset:512")
    e.label("K2_DG")
    e(f"s_mov_b32 s{S_MODE}, 1")
    e(f"s_cmp_gt_u32 s{S_M4}, {CAPF}")
    e("s_cbranch_scc1 K2_SKIPPL")
    e("s_cmp_lg_u32 s50, 0")
    e("s_cbranch_scc1 K2_SKIPPL")
    def tile_range():
        e(f"s_add_u32 s46, s{S_M4}, 31")
        e("s_lshr_b32 s46, s46, 5")
        e("s_lshr_b32 s47, s46, 3")
        e("s_and_b32 s46, s46, 7")
        e(f"s_mul_i32 s{S_T}, s47, s{S_W}")
        e(f"s_min_u32 s48, s46, s{S_W}")
        e(f"s_add_u32 s{S_T}, s{S_T}, s48")
        e(f"s_add_u32 s{S_TE}, s{S_T}, s47")
        e(f"s_cmp_lt_u32 s{S_W}, s46")
        e(f"s_addc_u32 s{S_TE}, s{S_TE}, 0")
    tile_range()
    def put(ent, base16, rank, cb):
        payload(8+0 if False else 16, ent, cb)
        e(f"v_lshl_add_u32 v12, v{rank}, 4, v{base16}")
        e(f"ds_write_b128 v12, v[16:19]")
    if 'p3' in ABL: pstamp(4)
    pads("a")
    if 'p3' in ABL: pstamp(5)
    e(f"s_mov_b64 s[{S_FL}:{S_FL+1}], 0")
    e(f"s_mov_b32 s{S_MODE}, 0")
    e(f"s_mov_b32 s{S_CNT}, 0")
    e(f"s_lshl_b32 s46, s{S_T}, 9")
    if L_LIST: e(f"s_add_u32 s46, s46, {L_LIST}")
    e(f"v_add_u32 v{V_LI}, s46, v{V_LI0}")
    e(f"v_add_u32 v{V_LE}, s46, v{V_LE0}")
    e(f"s_lshl_b32 s40, s{S_T}, 5")
    for s_ in desc_ops(): e(s_)
    e(f"v_add_u32 v{V_QE}, s{S_OEN}, v{V_QC}")
    e(f"v_add_u32 v{V_QO}, s{S_OON}, v{V_QC}")
    e(f"s_mov_b32 s{S_KB}, s{S_KBN}")
    e(f"s_mov_b32 s{S_OA}, s{S_OAN}")
    e(f"s_mov_b32 s{S_OB}, s{S_OBN}")
    e("s_waitcnt lgkmcnt(0)")
    if 'p3' in ABL: pstamp(3)
    for gi in (0,2):
        k0,rem,off=groups[gi]
        for j in range(4): e(f"v_lshl_add_u32 v{AD+k0+j}, v{96+k0+j}, 4, v{AD+k0+j}")
        for j in range(4):
            e(cmpx(gi,j))
            e(f"ds_write_b128 v{AD+k0+j}, {q4(PAY[k0+j])}")
        e("s_mov_b64 exec, -1")
    for gi in (1,3):
        k0,rem,off=groups[gi]
        for j in range(4):
            e(cmpx(gi,j))
            e(f"s_cbranch_execz K2_P{gi}")
            put(32+k0+j, AD+k0+j, 96+k0+j, 26 if gi<2 else 27)
        e.label(f"K2_P{gi}")
        e("s_mov_b64 exec, -1")
    e.label("K2_SKIPPL")
    e("s_waitcnt lgkmcnt(0)")
    def qtable():
        e(f"s_cmp_ge_u32 s{S_W}, 4")
        e("s_cbranch_scc1 K2_QD")
        for s_ in range(4):
            e(f"v_mfma_f32_32x32x16_bf16 v[96:111], {q4(128+4*s_)}, {q4(64+4*s_)}, {'0' if s_==0 else 'v[96:111]'}")
        for s_ in range(4):
            e(f"v_mfma_f32_32x32x16_bf16 v[32:47], {q4(144+4*s_)}, {q4(64+4*s_)}, {'0' if s_==0 else 'v[32:47]'}")
        e(f"s_lshl_b32 s47, s{S_W}, 7")
        e(f"s_add_u32 s47, s47, {L_QPK}")
        e("v_lshlrev_b32 v26, 2, v2")
        e("v_lshl_add_u32 v26, v3, 11, v26")
        e("v_add_u32 v26, s47, v26")
        e("v_lshlrev_b32 v24, 16, v24")
        e(f"s_mov_b32 s46, {f2u(-LOG2E/2):#x}")
        e("v_mul_f32 v24, s46, v24")
        e("s_nop 7")
        def qrows(d, t, rs, rowbase):
            for r in rs: e(f"v_fma_f32 v{d+r}, v{d+r}, s46, v24")
            for r in rs: e(f"v_cvt_pk_bf16_f32 v{t+r}, v{d+r}, v{d+r}")
            for r in rs: e(f"v_lshlrev_b32 v{t+r}, 16, v{t+r}")
            for r in rs: e(f"v_sub_f32 v{t+r}, v{d+r}, v{t+r}")
            for r in rs:
                e(f"v_cvt_pk_bf16_f32 v{t+r}, v{d+r}, v{t+r}")
                e(f"ds_write_b32 v26, v{t+r} offset:{512*(rowbase+(r&3)+8*(r>>2))}")
        qrows(96,128,range(16),0)
        qrows(32,48,range(4),32)
        e.label("K2_QD")
    qtable()
    for blk in range(4):
        e(f"v_mov_b32 v{Nn[blk]}, 0"); e(f"v_mov_b32 v{Nn[blk]+1}, 0")
        e(f"v_mov_b32 v{Pp[blk]}, 1.0"); e(f"v_mov_b32 v{Pp[blk]+1}, 1.0")
    if 'p3' in ABL: pstamp(6)
    e("s_waitcnt vmcnt(0) lgkmcnt(0)")
    e("s_barrier")
    stamp(3)
    def wread():
        e(f"v_add_u32 v27, {L_WM}, v25")
        for f in range(16): e(f"ds_read_b128 {q4(W+4*f)}, v27 offset:{1024*f}")
        for blk in range(4): e(f"ds_read_b128 {q4(W5+4*blk)}, v27 offset:{1024*(16+blk)}")
    e(f"s_cmp_eq_u32 s{S_MODE}, 1")
    e("s_cbranch_scc1 K2_SLOW")
    e(f"s_cmp_ge_u32 s{S_T}, s{S_TE}")
    e("s_cbranch_scc1 K2_LOOPDONE")
    for s_ in rd_idx()+rd_ent(): e(s_)
    e(f"v_add_u32 v{V_LI}, 0x200, v{V_LI}")
    e(f"v_add_u32 v{V_LE}, 0x200, v{V_LE}")
    e("s_waitcnt lgkmcnt(0)")
    for g in dma():
        for s_ in g: e(s_)
    e(egather())
    wread()
    e("s_waitcnt lgkmcnt(0)")
    for s_ in rd_Q()+rd_idx(): e(s_)
    e("s_waitcnt vmcnt(0)")
    for s_ in rd_A()+mvF()+rd_ent(): e(s_)
    e(f"v_add_u32 v{V_LI}, 0x200, v{V_LI}")
    e(f"v_add_u32 v{V_LE}, 0x200, v{V_LE}")
    e("s_waitcnt lgkmcnt(0)")
    for st in range(5): e(mfma(0,st,D[0]))
    for g in dma():
        for s_ in g: e(s_)
    e(egather())
    stamp(4)
    e("s_branch K2_DISP")
    e.label("K2_NEXT")
    e(f"s_add_u32 s{S_T}, s{S_T}, 1")
    e(f"s_cmp_ge_u32 s{S_T}, s{S_TE}")
    e("s_cbranch_scc1 K2_FLUSH")
    e(f"s_mov_b32 s{S_KB}, s{S_KBN}")
    e(f"s_mov_b32 s{S_OA}, s{S_OAN}")
    e(f"s_mov_b32 s{S_OB}, s{S_OBN}")
    e.label("K2_DISP")
    if 'kb8' in ABL: e("s_branch K2_V8")
    e(f"s_cmp_lt_u32 s{S_KB}, 4")
    e("s_cbranch_scc1 K2_DL")
    e(f"s_cmp_lt_u32 s{S_KB}, 6")
    e("s_cbranch_scc1 K2_D45")
    e(f"s_cmp_eq_u32 s{S_KB}, 6")
    e("s_cbranch_scc1 K2_V6")
    e(f"s_cmp_eq_u32 s{S_KB}, 7")
    e("s_cbranch_scc1 K2_V7")
    e.label("K2_V8"); tile_body(e,8,"v8"); e("s_branch K2_NEXT")
    e.label("K2_D45")
    e(f"s_cmp_eq_u32 s{S_KB}, 4")
    e("s_cbranch_scc1 K2_V4")
    e.label("K2_V5"); tile_body(e,5,"v5"); e("s_branch K2_NEXT")
    e.label("K2_DL")
    e(f"s_cmp_lt_u32 s{S_KB}, 2")
    e("s_cbranch_scc1 K2_D01")
    e(f"s_cmp_eq_u32 s{S_KB}, 2")
    e("s_cbranch_scc1 K2_V2")
    e.label("K2_V3"); tile_body(e,3,"v3"); e("s_branch K2_NEXT")
    e.label("K2_D01")
    e(f"s_cmp_eq_u32 s{S_KB}, 0")
    e("s_cbranch_scc1 K2_V0")
    e.label("K2_V1"); tile_body(e,1,"v1"); e("s_branch K2_NEXT")
    for kb in (0,2,4,6,7):
        e.label(f"K2_V{kb}"); tile_body(e,kb,f"v{kb}"); e("s_branch K2_NEXT")
    e.label("K2_FLUSH")
    e(f"v_lshl_add_u32 v{V_HA}, s{S_OB}, 1, v{V_HC}")
    for blk in range(4):
        for s_ in finalize(Nn[blk],Pp[blk],blk,mid=["s_nop 0"]): e(s_)
    e.label("K2_LOOPDONE")
    stamp(5)
    e("s_setprio 0")
    e(f"v_mov_b32 v{V_PR}, 0x7fffffff")
    e(f"ds_write_b32 v{V_PM}, v{V_PR}")
    def load_w2():
        e(f"s_and_b32 s46, s{S_W}, 1")
        e("s_lshl_b32 s47, s46, 13")
        e(f"s_add_u32 s47, s47, {WS_FRAG+36*1024}")
        e("v_lshlrev_b32 v4, 4, v1")
        for s_ in range(8):
            if s_==4: e("s_add_u32 s47, s47, 4096")
            e(f"buffer_load_dwordx4 {q4(W+4*s_)}, v4, s[{S_WS}:{S_WS+3}], s47 offen offset:{1024*(s_&3)}")
        srd(e,56,60,61,128)
        e("s_lshl_b32 s47, s46, 6")
        e("v_and_b32 v2, 31, v1")
        e("v_lshlrev_b32 v5, 1, v2")
        e("buffer_load_ushort v24, v5, s[56:59], s47 offen")
    e(f"s_cmp_eq_u64 s[{S_FL}:{S_FL+1}], 0")
    e("s_cbranch_scc1 K2_NOV")
    e(f"v_mov_b32 v5, {L_FLAG}")
    e("v_mov_b32 v6, 1")
    e("ds_write_b32 v5, v6 offset:4")
    e.label("K2_NOV")
    e("s_waitcnt vmcnt(0) lgkmcnt(0)")
    e(f"s_cmp_ge_u32 s{S_W}, 4")
    e("s_cbranch_scc1 K2_NW")
    load_w2()
    e.label("K2_NW")
    e("s_barrier")
    stamp(6)
    e(f"v_mov_b32 v5, {L_FLAG}")
    e("ds_read_b32 v6, v5 offset:4")
    e("s_waitcnt lgkmcnt(0)")
    e("v_readfirstlane_b32 s46, v6")
    e("s_cmp_eq_u32 s46, 0")
    e("s_cbranch_scc1 K2_EPI")
    e("s_waitcnt vmcnt(0)")
    e("s_barrier")
    zero_hsum()
    def reload_b():
        e("v_lshlrev_b32 v25, 4, v1")
        e(f"s_mov_b32 s47, {WS_FRAG}")
        for f in range(20):
            if f and f%4==0: e("s_add_u32 s47, s47, 4096")
            dst = W+4*f if f<16 else W5+4*(f-16)
            e(f"buffer_load_dwordx4 {q4(dst)}, v25, s[{S_WS}:{S_WS+3}], s47 offen offset:{1024*(f&3)}")
    reload_b()
    e("s_waitcnt vmcnt(0) lgkmcnt(0)")
    e("s_barrier")
    tile_range()
    e(f"s_mov_b32 s{S_MODE}, 0")
    e("s_branch K2_SAFE")
    e.label("K2_SLOW")
    wread()
    e(f"s_mov_b32 s{S_MODE}, 1")
    e("s_mov_b32 s66, 0")
    e("s_waitcnt lgkmcnt(0)")
    e("s_barrier")
    e(f"s_cmp_lg_u32 s{S_W}, 0")
    e("s_cbranch_scc1 K2_SR")
    e(f"v_lshlrev_b32 v4, 2, v1")
    e(f"v_add_u32 v4, {L_DEG}, v4")
    e("v_mov_b32 v5, 0")
    e("ds_write_b32 v4, v5")
    e.label("K2_SR")
    e("s_cmp_ge_u32 s66, 1000")
    e("s_cbranch_scc1 K2_EPI0")
    e("s_lshr_b32 s67, s66, 2")
    e("s_and_b32 s68, s66, 3")
    e("s_add_u32 s66, s66, 1")
    e("s_cmp_eq_u32 s68, 3")
    e("s_cbranch_scc1 K2_SR")
    e("s_lshl_b32 s46, s2, 14")
    e("s_lshl_b32 s47, s67, 6")
    e("s_add_u32 s54, s46, s47")
    e("v_min_u32 v4, 15, v1")
    e("v_lshlrev_b32 v4, 2, v4")
    e(f"buffer_load_dword v5, v4, s[{S_WS}:{S_WS+3}], s54 offen")
    e(f"s_mov_b32 s47, {VALID_LIM:#x}")
    e("s_waitcnt vmcnt(0)")
    e("v_cmp_gt_u32 vcc, s47, v5")
    e("v_readlane_b32 s55, v5, 15")
    e("s_and_b32 s48, vcc_lo, 0xffff")
    e("s_bcnt1_i32_b32 s69, s48")
    e("s_cmp_eq_u32 s68, 0")
    e("s_cbranch_scc1 K2_SR0")
    e("s_add_u32 s47, s55, 1")
    e("s_cmp_le_u32 s47, 0xf0000000")
    e("s_cbranch_scc1 K2_SR")
    e("s_and_b32 s69, s55, 0xfff")
    e("s_lshr_b32 s47, s55, 12")
    e("s_and_b32 s47, s47, 0xfff")
    e("s_sub_u32 s48, s68, 1")
    e("s_mul_i32 s48, s48, 1280")
    e("s_cmp_le_u32 s69, s48")
    e("s_cbranch_scc1 K2_SR")
    e("s_sub_u32 s69, s69, s48")
    e("s_min_u32 s69, s69, 1280")
    e("s_add_u32 s47, s47, s48")
    e("s_lshl_b32 s47, s47, 2")
    e("s_mul_i32 s54, s67, 10240")
    e("s_add_u32 s54, s54, s47")
    e(f"s_add_u32 s54, s54, {WS_OV}")
    e.label("K2_SR0")
    e("s_cmp_eq_u32 s69, 0")
    e("s_cbranch_scc1 K2_SR")
    e("s_waitcnt lgkmcnt(0)")
    e("s_barrier")
    e("v_cmp_gt_u32 vcc, 64, v0")
    e("s_and_saveexec_b64 s[46:47], vcc")
    e("s_cbranch_execz K2_I1")
    e("v_lshlrev_b32 v27, 2, v0")
    e(f"v_add_u32 v27, {L_CNT}, v27")
    e("v_mov_b32 v5, 0")
    e("ds_write_b32 v27, v5")
    e.label("K2_I1")
    e("s_mov_b64 exec, s[46:47]")
    e("s_mov_b32 s46, s54")
    e("v_lshlrev_b32 v4, 2, v0")
    e(f"buffer_load_dword v32, v4, s[{S_WS}:{S_WS+3}], s46 offen")
    e(f"buffer_load_dword v33, v4, s[{S_WS}:{S_WS+3}], s46 offen offset:2048")
    e("v_add_u32 v5, 0x1000, v4")
    e(f"buffer_load_dword v34, v5, s[{S_WS}:{S_WS+3}], s46 offen")
    e("v_sub_u32 v28, s69, v0")
    e("s_waitcnt vmcnt(0) lgkmcnt(0)")
    e("s_barrier")
    e("v_mov_b32 v7, 1")
    e(f"s_mov_b32 s46, {L_CNT}")
    for k in range(3):
        e(f"v_and_b32 v{64+k}, 63, v{32+k}")
        e(f"v_lshl_add_u32 v{64+k}, v{64+k}, 2, s46")
    e("s_movk_i32 s47, 512")
    e("s_movk_i32 s48, 1024")
    for k,th in ((0,"0"),(1,"s47"),(2,"s48")):
        e(f"v_cmpx_lt_i32 vcc, {th}, v28")
        e(f"ds_add_rtn_u32 v{96+k}, v{64+k}, v7")
    e("s_mov_b64 exec, -1")
    e("s_waitcnt lgkmcnt(0)")
    e("s_barrier")
    node_scan(False,"b")
    e(f"s_cmp_lg_u32 s{S_W}, 0")
    e("s_cbranch_scc1 K2_DG2")
    e("ds_add_u32 v4, v5 offset:512")
    e.label("K2_DG2")
    e("s_mul_i32 s46, s67, 20480")
    e("v_mov_b32 v30, s46")
    for k in range(3): e(f"ds_read_b32 v{64+k}, v{64+k} offset:256")
    e(f"v_mov_b32 v6, {KONE:#x}")
    e("s_movk_i32 s47, 512")
    e("s_movk_i32 s48, 1024")
    e("s_waitcnt lgkmcnt(0)")
    for k,th in ((0,"0"),(1,"s47"),(2,"s48")):
        e(f"v_cmpx_lt_i32 vcc, {th}, v28")
        put(32+k, 64+k, 96+k, 30)
    e("s_mov_b64 exec, -1")
    pads("b")
    tile_range()
    e("s_waitcnt lgkmcnt(0)")
    e("s_barrier")
    e.label("K2_SAFE")
    e(f"s_cmp_ge_u32 s{S_T}, s{S_TE}")
    e("s_cbranch_scc1 K2_SAFEDONE")
    e(f"s_lshl_b32 s46, s{S_T}, 9")
    if L_LIST: e(f"s_add_u32 s46, s46, {L_LIST}")
    e(f"v_add_u32 v{V_LI}, s46, v{V_LI0}")
    e(f"v_add_u32 v{V_LE}, s46, v{V_LE0}")
    e.label("K2_SFL")
    for s_ in rd_idx()+rd_ent(): e(s_)
    e(f"s_lshl_b32 s40, s{S_T}, 5")
    for s_ in desc_ops(): e(s_)
    e(f"v_add_u32 v{V_LI}, 0x200, v{V_LI}")
    e(f"v_add_u32 v{V_LE}, 0x200, v{V_LE}")
    e("s_waitcnt lgkmcnt(0)")
    for g in dma():
        for s_ in g: e(s_)
    e(egather())
    e(f"v_add_u32 v{V_QE}, s{S_OEN}, v{V_QC}")
    e(f"v_add_u32 v{V_QO}, s{S_OON}, v{V_QC}")
    e("s_waitcnt vmcnt(0)")
    for s_ in rd_A()+mvF()+rd_Q(): e(s_)
    e("s_waitcnt lgkmcnt(0)")
    for blk in range(4):
        for st in range(5): e(mfma(blk,st,D[0]))
        e("s_nop 7"); e("s_nop 7")
        for j in range(8):
            e(f"s_cmp_lt_u32 {j}, s{S_KBN}")
            e(f"s_cselect_b32 s46, s{S_OAN}, s{S_OBN}")
            e(f"v_lshl_add_u32 v{V_HA}, s46, 1, v{V_HC}")
            for u in range(2):
                z=D[0]+2*j+u
                e(f"v_exp_f32 v{T+u}, v{z}")
            e("s_nop 0")
            for u in range(2): e(f"v_add_f32 v{T+u}, 1.0, v{T+u}")
            for u in range(2): e(f"v_rcp_f32 v{T+u}, v{T+u}")
            e("s_nop 0")
            for u in range(2): e(f"v_mul_f32 v{T+u}, v{D[0]+2*j+u}, v{T+u}")
            e(f"v_add_f32 v{TM}, v{T}, v{T+1}")
            e(f"v_cvt_f64_f32 {pr(T)}, v{TM}")
            e(f"ds_add_f64 v{V_HA}, {pr(T)} offset:{256*blk}")
    e(f"s_add_u32 s{S_T}, s{S_T}, 1")
    e(f"s_cmp_lt_u32 s{S_T}, s{S_TE}")
    e("s_cbranch_scc1 K2_SFL")
    e.label("K2_SAFEDONE")
    e(f"s_cmp_eq_u32 s{S_MODE}, 1")
    e("s_cbranch_scc1 K2_SR")
    e.label("K2_EPI0")
    e("s_waitcnt vmcnt(0) lgkmcnt(0)")
    e(f"s_cmp_ge_u32 s{S_W}, 4")
    e("s_cbranch_scc1 K2_NW2")
    load_w2()
    e.label("K2_NW2")
    e("s_barrier")
    e.label("K2_EPI")
    e(f"s_mov_b32 s46, {f2u(-0.6931471805599453):#x}")
    e("v_lshlrev_b32 v4, 5, v0")
    e(f"v_add_u32 v4, {L_HSUM}, v4")
    for i in range(2):
        e(f"ds_read_b128 {q4(52+8*i)}, v4 offset:{16384*i}")
        e(f"ds_read_b128 {q4(56+8*i)}, v4 offset:{16384*i+16}")
    e("v_lshrrev_b32 v5, 5, v0")
    e("v_and_b32 v6, 31, v0")
    e("v_lshlrev_b32 v6, 3, v6")
    e(f"s_movk_i32 s47, {PL_STRIDE}")
    e("v_mad_u32_u24 v5, v5, s47, v6")
    e(f"s_cmp_ge_u32 s{S_W}, 4")
    e("s_cbranch_scc1 K2_E0")
    e(f"ds_read_b128 {q4(68)}, v4 offset:32768")
    e(f"ds_read_b128 {q4(72)}, v4 offset:32784")
    e.label("K2_E0")
    e("s_waitcnt lgkmcnt(0)")
    def conv(i):
        b=32+4*i; off=16*i*PL_STRIDE
        for u in range(4): e(f"v_cvt_f32_f64 v{b+u}, {pr(52+8*i+2*u)}")
        for u in range(4): e(f"v_mul_f32 v{b+u}, s46, v{b+u}")
        e(f"v_cvt_pk_bf16_f32 v44, v{b}, v{b+1}")
        e(f"v_cvt_pk_bf16_f32 v45, v{b+2}, v{b+3}")
        e(f"ds_write_b64 v5, v[44:45] offset:{L_PHI+off}")
        e("v_lshlrev_b32 v46, 16, v44"); e("v_and_b32 v47, 0xffff0000, v44")
        e("v_lshlrev_b32 v48, 16, v45"); e("v_and_b32 v49, 0xffff0000, v45")
        for u in range(4): e(f"v_sub_f32 v{b+u}, v{b+u}, v{46+u}")
        e(f"v_cvt_pk_bf16_f32 v50, v{b}, v{b+1}")
        e(f"v_cvt_pk_bf16_f32 v51, v{b+2}, v{b+3}")
        e(f"ds_write_b64 v5, v[50:51] offset:{L_PLO+off}")
    conv(0); conv(1)
    e(f"s_cmp_ge_u32 s{S_W}, 4")
    e("s_cbranch_scc1 K2_E2")
    conv(2)
    e.label("K2_E2")
    e("s_waitcnt lgkmcnt(0)")
    e("s_barrier")
    e(f"s_cmp_ge_u32 s{S_W}, 4")
    e("s_cbranch_scc1 "+("K2_ST" if STAMP else "K2_END"))
    e("v_and_b32 v2, 31, v1")
    e("v_lshrrev_b32 v3, 5, v1")
    e(f"s_lshr_b32 s46, s{S_W}, 1")
    e("s_lshl_b32 s48, s46, 5")
    e("v_add_u32 v4, s48, v2")
    e(f"s_movk_i32 s47, {PL_STRIDE}")
    e("v_mul_u32_u24 v4, s47, v4")
    e("v_lshl_add_u32 v4, v3, 4, v4")
    for s_ in range(8): e(f"ds_read_b128 {q4(32+4*s_)}, v4 offset:{L_PHI+32*s_}")
    e("v_lshlrev_b32 v5, 4, v3")
    e("s_lshl_b32 s48, s48, 2")
    e(f"s_add_u32 s48, s48, {L_DEG}")
    e("v_add_u32 v5, s48, v5")
    for s_ in range(4): e(f"ds_read_b128 {q4(64+4*s_)}, v4 offset:{L_PLO+32*s_}")
    e("s_waitcnt vmcnt(0) lgkmcnt(4)")
    for s_ in range(8):
        c="0" if s_==0 else "v[112:127]"
        e(f"v_mfma_f32_32x32x16_bf16 v[112:127], {q4(32+4*s_)}, {q4(W+4*s_)}, {c}")
        if s_<4: e(f"ds_read_b128 {q4(80+4*s_)}, v4 offset:{L_PLO+32*(4+s_)}")
        else: e(f"ds_read_b128 {q4(96+4*(s_-4))}, v5 offset:{32*(s_-4)}")
    e("s_waitcnt lgkmcnt(4)")
    for s_ in range(8):
        e(f"v_mfma_f32_32x32x16_bf16 v[112:127], {q4(64+4*s_)}, {q4(W+4*s_)}, v[112:127]")
    e("v_lshlrev_b32 v24, 16, v24")
    srd(e,S_XR,62,63,N_NODES*128)
    e(f"s_lshl_b32 s48, s46, 5")
    e(f"s_add_u32 s48, s48, s{S_N0}")
    e("s_lshl_b32 s48, s48, 7")
    e(f"s_and_b32 s49, s{S_W}, 1")
    e("s_lshl_b32 s49, s49, 6")
    e("s_add_u32 s48, s48, s49")
    e("v_lshlrev_b32 v6, 1, v2")
    e("v_lshl_add_u32 v6, v3, 9, v6")
    e("s_lshl_b32 s49, s46, 5")
    e(f"s_sub_u32 s49, s{S_NN}, s49")
    e("v_lshlrev_b32 v7, 2, v3")
    e("v_sub_u32 v7, s49, v7")
    e("s_waitcnt lgkmcnt(0)")
    for r in range(16): e(f"v_cvt_f32_u32 v{96+r}, v{96+r}")
    for r in range(16):
        e(f"v_fma_f32 v{112+r}, v{96+r}, v24, v{112+r}")
    for r in range(16):
        e(f"v_cvt_pk_bf16_f32 v{112+r}, v{112+r}, v{112+r}")
    for r in range(16):
        ro=(r&3)+8*(r>>2)
        e(f"v_cmpx_lt_i32 vcc, {ro}, v7")
        e(f"buffer_store_short v{112+r}, v6, s[{S_XR}:{S_XR+3}], s48 offen offset:{128*ro}")
    if STAMP:
        e.label("K2_ST")
        e("s_mov_b64 exec, -1")
        e("s_waitcnt vmcnt(0)")
        stamp(7)
        e("s_memrealtime s[88:89]")
        e("s_waitcnt lgkmcnt(0)")
        srd(e,56,52,53,0x1000000)
        e("s_lshl_b32 s46, s2, 3")
        e(f"s_add_u32 s46, s46, s{S_W}")
        e("s_lshl_b32 s46, s46, 6")
        e("s_add_u32 s46, s46, 0x800000")
        for i in range(10):
            e(f"v_mov_b32 v4, s{70+2*i}")
            e("v_mov_b32 v5, 0")
            e(f"buffer_store_dword v4, v5, s[56:59], s46 offen offset:{4*i}")
    e.label("K2_END")
    e("s_endpgm")
    return e.text(), NV, 96
```

```python
from common import *
L1_CELL=2048; L1_OV=L1_CELL+16384; K1_LDS=L1_OV+10240
STAMP=False
ABL=set()
def gen_k1():
    e=Em()
    e.label("sort_kernel")
    e("s_cmp_ge_u32 s2, 256")
    e("s_cbranch_scc1 K1_END")
    if STAMP: e("s_memrealtime s[42:43]")
    e("s_load_dwordx4 s[4:7], s[0:1], 16")
    e("s_load_dwordx2 s[8:9], s[0:1], 80")
    e("s_load_dwordx2 s[10:11], s[0:1], 32")
    e("s_load_dwordx2 s[20:21], s[0:1], 48")
    e("s_load_dwordx2 s[40:41], s[0:1], 0")
    e("v_lshlrev_b32 v1, 4, v0")
    e("v_and_b32 v2, 63, v0")
    e("s_mul_i32 s22, s2, 10240")
    e(f"s_mov_b32 s28, {MAGIC_B}")
    e("s_movk_i32 s29, 625")
    e("s_cmp_ge_u32 s2, 250")
    e("s_cbranch_scc1 K1_PREP")
    e("s_waitcnt lgkmcnt(0)")
    srd(e,16,6,7,E*4)
    srd(e,12,4,5,E*4)
    e("buffer_load_dwordx4 v[4:7], v1, s[16:19], s22 offen")
    e("buffer_load_dwordx4 v[8:11], v1, s[12:15], s22 offen")
    srd(e,24,8,9,WS_END)
    if 'nopf' not in ABL:
        srd(e,36,40,41,N_NODES*128)
        if 'pf8' in ABL:
            e("s_lshr_b32 s23, s2, 3")
            e("s_mul_i32 s23, s23, 40960")
            for i in range(4):
                e(f"buffer_load_dwordx4 v[{60+4*i}:{63+4*i}], v1, s[36:39], s23 offen")
                if i<3: e("s_add_u32 s23, s23, 10240")
        else:
            e("s_mul_i32 s23, s2, 5120")
            e("v_lshlrev_b32 v60, 3, v0")
            e("buffer_load_dwordx2 v[60:61], v60, s[36:39], s23 offen")
    e("v_mov_b32 v12, 0")
    e("v_mov_b32 v13, 1")
    e("v_lshlrev_b32 v3, 2, v0")
    e("v_cmp_gt_u32 vcc, 256, v0")
    e("s_and_saveexec_b64 s[30:31], vcc")
    e("s_cbranch_execz K1_Z")
    e("ds_write_b32 v3, v12")
    e.label("K1_Z")
    e("s_mov_b64 exec, s[30:31]")
    for r in (28,29,30,31): e(f"v_mov_b32 v{r}, -1")
    e(f"ds_write_b128 v1, v[28:31] offset:{L1_CELL}")
    e("v_cmp_gt_u32 vcc, 384, v0")
    e("s_and_saveexec_b64 s[30:31], vcc")
    e("s_cbranch_execz K1_Z2")
    e(f"ds_write_b128 v1, v[28:31] offset:{L1_CELL+10240}")
    e.label("K1_Z2")
    e("s_mov_b64 exec, s[30:31]")
    e("v_lshlrev_b32 v14, 22, v0")
    e("s_waitcnt lgkmcnt(0)")
    e("s_barrier")
    e("s_waitcnt vmcnt(%d)"%(1 if 'nopf' in ABL else (5 if 'pf8' in ABL else 2)))
    for j in range(4):
        e(f"v_mul_u32_u24 v{16+j}, s28, v{4+j}")
    for j in range(4):
        e(f"v_lshrrev_b32 v{16+j}, 23, v{16+j}")
    for j in range(4):
        e(f"v_and_b32 v{16+j}, 0xff, v{16+j}")
    for j in range(4):
        e(f"v_mad_u32_u24 v{20+j}, v{16+j}, s29, 15")
    for j in range(4):
        e(f"v_lshlrev_b32 v{16+j}, 2, v{16+j}")
        e(f"ds_add_rtn_u32 v{24+j}, v{16+j}, v13")
    for j in range(4):
        e(f"v_lshrrev_b32 v{20+j}, 4, v{20+j}")
        e(f"v_sub_u32 v{20+j}, v{4+j}, v{20+j}")
        e(f"v_and_b32 v{20+j}, 63, v{20+j}")
    e("s_waitcnt vmcnt(%d)"%(0 if 'nopf' in ABL else (4 if 'pf8' in ABL else 1)))
    for j in range(4):
        e(f"v_and_b32 v{8+j}, 0x3fff, v{8+j}")
        e(f"v_lshl_or_b32 v{20+j}, v{8+j}, 6, v{20+j}")
        e(f"v_or_b32 v{20+j}, v{20+j}, v14")
        if j<3: e("v_add_u32 v14, 0x100000, v14")
    e("s_waitcnt lgkmcnt(0)")
    e("s_barrier")
    e("v_lshlrev_b32 v28, 4, v2")
    e("ds_read_b128 v[32:35], v28")
    e("s_waitcnt lgkmcnt(0)")
    for j in range(4):
        e(f"v_add_u32 v{48+j}, -12, v{32+j}")
    for j in range(4):
        e(f"v_and_b32 v{48+j}, -4, v{48+j}")
    for j in range(4):
        e(f"v_cmp_lt_u32 vcc, 16, v{32+j}")
        e("s_nop 1")
        e(f"v_cndmask_b32 v{48+j}, 0, v{48+j}, vcc")
    e("v_add_u32 v36, v48, v49")
    e("v_add_u32 v37, v50, v51")
    e("v_add_u32 v36, v36, v37")
    e("v_mov_b32 v37, v36")
    scan_incl(e,37)
    e("v_sub_u32 v40, v37, v36")
    e("v_add_u32 v41, v40, v48")
    e("v_add_u32 v42, v41, v49")
    e("v_add_u32 v43, v42, v50")
    e("v_readlane_b32 s34, v37, 63")
    for j in range(4): e(f"v_lshl_or_b32 v{52+j}, v{40+j}, 16, v{32+j}")
    e("ds_write_b128 v28, v[52:55] offset:1024")
    for j in range(4):
        e(f"ds_read_b32 v{44+j}, v{16+j} offset:1024")
    e("v_cmp_gt_u32 vcc, 64, v0")
    e("s_and_saveexec_b64 s[30:31], vcc")
    e("s_cbranch_execz K1_P")
    e("v_lshlrev_b32 v56, 8, v2")
    e("s_mov_b32 s23, 0xf0000000")
    for j in range(4):
        e(f"v_add_u32 v57, -15, v{32+j}")
        e(f"v_lshl_or_b32 v57, v{40+j}, 12, v57")
        e("v_or_b32 v57, s23, v57")
        e(f"v_cmpx_lt_u32 vcc, 16, v{32+j}")
        e(f"ds_write_b32 v56, v57 offset:{L1_CELL+64*j+60}")
        e("s_mov_b64 exec, -1")
    e.label("K1_P")
    e("s_mov_b64 exec, s[30:31]")
    e("s_waitcnt lgkmcnt(0)")
    for j in range(4):
        e(f"v_and_b32 v32, 0xffff, v{44+j}")
        e(f"v_lshrrev_b32 v33, 16, v{44+j}")
        e(f"v_cmp_lt_u32 vcc, 16, v32")
        e(f"v_lshlrev_b32 v34, 4, v{16+j}")
        e(f"v_add_lshl_u32 v33, v33, v{24+j}, 2")
        e(f"v_cndmask_b32 v32, 16, 15, vcc")
        e(f"v_lshl_add_u32 v34, v{24+j}, 2, v34")
        e(f"v_cmp_lt_u32 vcc, v{24+j}, v32")
        e(f"v_add_u32 v33, {L1_OV-L1_CELL-60}, v33")
        e("s_nop 0")
        e(f"v_cndmask_b32 v34, v33, v34, vcc")
        e(f"ds_write_b32 v34, v{20+j} offset:{L1_CELL}")
    e("s_waitcnt lgkmcnt(0)")
    e("s_barrier")
    e(f"ds_read_b128 v[4:7], v1 offset:{L1_CELL}")
    e("v_lshrrev_b32 v12, 2, v0")
    e("v_and_b32 v13, 3, v0")
    e("v_lshlrev_b32 v13, 4, v13")
    e("v_lshl_add_u32 v12, v12, 14, v13")
    e("s_lshl_b32 s22, s2, 6")
    e("v_cmp_gt_u32 vcc, 384, v0")
    e("s_and_saveexec_b64 s[30:31], vcc")
    e("s_cbranch_execz K1_C2")
    e(f"ds_read_b128 v[8:11], v1 offset:{L1_CELL+10240}")
    e(f"v_add_u32 v14, {160*16384}, v12")
    e("s_waitcnt lgkmcnt(0)")
    e("buffer_store_dwordx4 v[8:11], v14, s[24:27], s22 offen")
    e.label("K1_C2")
    e("s_mov_b64 exec, s[30:31]")
    e("s_waitcnt lgkmcnt(0)")
    e("buffer_store_dwordx4 v[4:7], v12, s[24:27], s22 offen")
    e("s_lshl_b32 s34, s34, 2")
    e("v_cmp_gt_u32 vcc, s34, v1")
    e("s_and_saveexec_b64 s[30:31], vcc")
    e("s_cbranch_execz K1_C3")
    e(f"ds_read_b128 v[8:11], v1 offset:{L1_OV}")
    e("s_mul_i32 s22, s2, 10240")
    e(f"s_add_u32 s22, s22, {WS_OV}")
    e("s_waitcnt lgkmcnt(0)")
    e("buffer_store_dwordx4 v[8:11], v1, s[24:27], s22 offen")
    e.label("K1_C3")
    e("s_mov_b64 exec, s[30:31]")
    if STAMP:
        e("s_waitcnt vmcnt(0)")
        e("s_memrealtime s[44:45]")
        e("s_waitcnt lgkmcnt(0)")
        srd(e,24,8,9,0x1000000)
        e("s_lshl_b32 s23, s2, 3")
        e("s_add_u32 s23, s23, 0x880000")
        e("v_mov_b32 v4, s42"); e("v_mov_b32 v5, s44"); e("v_mov_b32 v6, 0")
        e("buffer_store_dwordx2 v[4:5], v6, s[24:27], s23 offen")
    e("s_endpgm")
    e.label("K1_PREP")
    e("v_lshrrev_b32 v3, 6, v0")
    e("v_and_b32 v4, 31, v2")
    e("v_lshrrev_b32 v5, 5, v2")
    e("v_readfirstlane_b32 s23, v3")
    e("s_sub_u32 s22, s2, 250")
    e("s_mul_i32 s22, s22, 10")
    e("s_add_u32 s22, s22, s23")
    e("s_cmp_ge_u32 s22, 52")
    e("s_cbranch_scc1 K1_END")
    e("s_waitcnt lgkmcnt(0)")
    srd(e,12,10,11,132*128*2)
    srd(e,16,20,21,128*64*2)
    srd(e,24,8,9,WS_END)
    e(f"s_mov_b32 s30, {f2u(-LOG2E):#x}")
    e("v_lshlrev_b32 v6, 4, v2")
    e("s_lshl_b32 s31, s22, 10")
    e(f"s_add_u32 s31, s31, {WS_FRAG}")
    e("v_lshlrev_b32 v7, 1, v4")
    e("s_cmp_ge_u32 s22, 36")
    e("s_cbranch_scc1 K1_W2")
    e("s_cmp_ge_u32 s22, 20")
    e("s_cbranch_scc1 K1_W1D")
    e("s_cmp_ge_u32 s22, 16")
    e("s_cbranch_scc1 K1_WE")
    def load_w1(rowbase_bytes):
        e("v_lshl_add_u32 v8, v5, 13, v7")
        e("s_and_b32 s33, s32, 3")
        e("s_lshl_b32 s33, s33, 11")
        e("s_lshr_b32 s34, s32, 2")
        e("s_lshl_b32 s34, s34, 6")
        e("s_add_u32 s33, s33, s34")
        if rowbase_bytes: e(f"s_add_u32 s33, s33, {rowbase_bytes}")
        for j in range(8):
            e(f"buffer_load_ushort v{10+j}, v8, s[12:15], s33 offen offset:{256*j}")
    e("s_mov_b32 s32, s22")
    load_w1(0)
    e("s_waitcnt vmcnt(0)")
    for j in range(8):
        e(f"v_lshlrev_b32 v{10+j}, 16, v{10+j}")
        e(f"v_mul_f32 v{10+j}, s30, v{10+j}")
    for j in range(4):
        e(f"v_cvt_pk_bf16_f32 v{20+j}, v{10+2*j}, v{11+2*j}")
    e("s_branch K1_ST")
    e.label("K1_W1D")
    e("s_sub_u32 s32, s22, 20")
    load_w1(64*256)
    e("s_waitcnt vmcnt(0)")
    for j in range(4):
        e(f"v_lshl_or_b32 v{20+j}, v{11+2*j}, 16, v{10+2*j}")
    e("s_branch K1_ST")
    e.label("K1_WE")
    e("s_sub_u32 s32, s22, 16")
    e("s_lshl_b32 s33, s32, 6")
    e(f"s_add_u32 s33, s33, {128*256}")
    for j in range(4):
        e(f"buffer_load_ushort v{10+j}, v7, s[12:15], s33 offen offset:{256*j}")
    e("s_waitcnt vmcnt(0)")
    for j in range(4):
        e(f"v_lshlrev_b32 v{10+j}, 16, v{10+j}")
        e(f"v_mul_f32 v{10+j}, s30, v{10+j}")
    for j in range(2):
        e(f"v_cvt_pk_bf16_f32 v{20+j}, v{10+2*j}, v{11+2*j}")
    for j in range(2):
        e(f"v_lshlrev_b32 v14, 16, v{20+j}")
        e(f"v_and_b32 v15, 0xffff0000, v{20+j}")
        e(f"v_sub_f32 v14, v{10+2*j}, v14")
        e(f"v_sub_f32 v15, v{11+2*j}, v15")
        e(f"v_cvt_pk_bf16_f32 v{16+j}, v14, v15")
    e("v_cmp_eq_u32 vcc, 1, v5")
    e("s_nop 1")
    e("v_cndmask_b32 v20, v20, v16, vcc")
    e("v_cndmask_b32 v21, v21, v17, vcc")
    e("v_mov_b32 v22, 0")
    e("v_mov_b32 v23, 0")
    e("s_branch K1_ST")
    e.label("K1_W2")
    e("s_sub_u32 s32, s22, 36")
    e("s_and_b32 s33, s32, 7")
    e("s_lshl_b32 s33, s33, 11")
    e("s_lshr_b32 s34, s32, 3")
    e("s_lshl_b32 s34, s34, 6")
    e("s_add_u32 s33, s33, s34")
    e("v_lshl_add_u32 v8, v5, 10, v7")
    for j in range(8):
        e(f"buffer_load_ushort v{10+j}, v8, s[16:19], s33 offen offset:{128*j}")
    e("s_waitcnt vmcnt(0)")
    for j in range(4):
        e(f"v_lshl_or_b32 v{20+j}, v{11+2*j}, 16, v{10+2*j}")
    e.label("K1_ST")
    e("buffer_store_dwordx4 v[20:23], v6, s[24:27], s31 offen")
    e.label("K1_END")
    e("s_endpgm")
    return e.text(), 80, 48
```
